```python
import torch

def _softmax(x, axis=-1):
    return torch.softmax(x, dim=axis)
def _gelu(x):
    return torch.nn.functional.gelu(x, approximate="tanh")
def _silu(x):
    return torch.nn.functional.silu(x)
def _sigmoid(x):
    return torch.sigmoid(x)
def _layernorm(x, axis=-1, eps=1e-5):
    m = x.mean(dim=axis, keepdim=True)
    v = x.var(dim=axis, keepdim=True, unbiased=False)
    return (x - m) / torch.sqrt(v + eps)
def _scatter_add(tgt, idx, src, axis=0):
    return tgt.clone().index_add_(axis, idx, src)
def _segment_sum(src, seg, n):
    out = torch.zeros((n,) + src.shape[1:], dtype=src.dtype)
    return out.index_add_(0, seg, src)
def _pad(x, pw):
    flat = tuple(v for pair in reversed(pw) for v in pair)
    return torch.nn.functional.pad(x, flat)

kernel_name = 'gather_scatter__cheap_equivariant_egnn__graph'

def setup_inputs():

    _w = (lambda a: (lambda t: t.to(torch.bfloat16) if t.is_floating_point() else t)(torch.as_tensor(a)))
    N, deg, D, De = 10000, 16, 256, max(16, 1)
    E = N * deg
    return {
        "h": _w((lambda *s: torch.randn(*s, dtype=torch.bfloat16) * 0.1)(N, D)),
        "pos": _w((lambda *s: torch.randn(*s, dtype=torch.bfloat16) * 0.8)(N, 3)),
        "e_attr": _w((lambda *s: torch.randn(*s, dtype=torch.bfloat16) * 0.8)(E, De)),
        "src": _w((lambda lo, hi, *s: torch.randint(lo, hi, s))(0, N, E).to(torch.int64)),
        "dst": _w((lambda lo, hi, *s: torch.randint(lo, hi, s))(0, N, E).to(torch.int64)),
        "w_e": _w(0.1 * (lambda *s: torch.randn(*s, dtype=torch.bfloat16) * 0.8)(2 * D + 1 + De, D)),
        "w_x": _w(0.1 * (lambda *s: torch.randn(*s, dtype=torch.bfloat16) * 0.1)(D, 1)),
        "w_h": _w(0.1 * (lambda *s: torch.randn(*s, dtype=torch.bfloat16) * 0.1)(2 * D, D)),
    }

def reference(h, pos, e_attr, src, dst, w_e, w_x, w_h):
    N, D = h.shape[0], h.shape[1]
    diff = pos[dst] - pos[src]
    dist2 = torch.sum(diff * diff, axis=-1, keepdims=True)
    e_in = torch.concatenate([h[dst], h[src], dist2, e_attr], axis=-1)
    m_ij = _silu(e_in @ w_e)
    coord_scale = m_ij @ w_x
    pos_new = pos + _segment_sum(diff * coord_scale, dst, N)
    m_i = _segment_sum(m_ij, dst, N)
    h_new = h + _silu(torch.concatenate([h, m_i], axis=-1) @ w_h)
    return h_new, pos_new
```

```python
import re

TRANS = ("v_exp_f32","v_log_f32","v_rcp_f32","v_rsq_f32","v_sqrt_f32","v_sin_f32","v_cos_f32","v_exp_f16","v_rcp_f16")
MFMA_PASSES = {"v_mfma_f32_32x32x16_bf16":8, "v_mfma_f32_16x16x32_bf16":4}

def _expand(tok):
    tok = tok.strip()
    neg = tok.lstrip('-')
    if neg.startswith('abs(') or neg.startswith('|'):
        neg = neg.replace('abs(','').replace(')','').replace('|','')
    tok = neg
    m = re.fullmatch(r'([vsa])\[(\d+):(\d+)\]', tok)
    if m:
        return [(m.group(1), i) for i in range(int(m.group(2)), int(m.group(3))+1)]
    m = re.fullmatch(r'([vsa])(\d+)', tok)
    if m:
        return [(m.group(1), int(m.group(2)))]
    if tok in ('vcc','vcc_lo','vcc_hi'): return [('vcc',0)]
    if tok in ('exec','exec_lo','exec_hi'): return [('exec',0)]
    if tok == 'm0': return [('m0',0)]
    return []

class Ins:
    __slots__=('text','op','dst','src','kind','passes','label','branch','srcC','srcAB','lds_dma','dpp','wide_store_data','raw')
    def __init__(self, text):
        self.text=text; self.label=None; self.branch=None; self.dst=[]; self.src=[]; self.kind='other'
        self.passes=0; self.srcC=[]; self.srcAB=[]; self.lds_dma=False; self.dpp=False; self.wide_store_data=[]; self.raw=False
        t=text.split(';')[0].strip()
        if not t:
            self.kind='comment'; self.op=''; return
        if t.endswith(':'):
            self.kind='label'; self.label=t[:-1]; self.op=''; return
        if t.startswith('.'):
            self.kind='comment'; self.op=''; return
        parts=t.split(None,1)
        op=parts[0]; self.op=op
        rest=parts[1] if len(parts)>1 else ''
        ops=[]; cur=''; depth=0
        for ch in rest:
            if ch=='[': depth+=1
            if ch==']': depth-=1
            if ch==',' and depth==0:
                ops.append(cur.strip()); cur=''
            else: cur+=ch
        if cur.strip(): ops.append(cur.strip())
        mods=''
        if ops:
            last=ops[-1].split(None,1)
            ops[-1]=last[0]
            if len(last)>1: mods=last[1]
        base=op
        for suf in ('_e32','_e64','_dpp','_sdwa'):
            if base.endswith(suf): base=base[:-len(suf)]
        if 'row_' in mods or 'quad_perm' in mods or op.endswith('_dpp') or 'wave_' in mods: self.dpp=True
        E=lambda L: sum((_expand(x) for x in L), [])
        if base in MFMA_PASSES:
            self.kind='mfma'; self.passes=MFMA_PASSES[base]
            self.dst=E(ops[0:1]); self.srcAB=E(ops[1:3]); self.srcC=E(ops[3:4]); self.src=self.srcAB+self.srcC
        elif base.startswith('v_cmp'):
            self.kind='valu'; self.dst=E(ops[0:1]); self.src=E(ops[1:])
            if base.startswith('v_cmpx'): self.dst+= [('exec',0)]
        elif base in ('v_readlane_b32','v_readfirstlane_b32'):
            self.kind='valu'; self.dst=E(ops[0:1]); self.src=E(ops[1:])
        elif base in ('v_add_co_u32','v_sub_co_u32','v_addc_co_u32','v_subb_co_u32','v_subrev_co_u32'):
            self.kind='valu'; self.dst=E(ops[0:2]); self.src=E(ops[2:])
        elif base in ('v_permlane32_swap_b32','v_permlane16_swap_b32'):
            self.kind='valu'; self.dst=E(ops[0:2]); self.src=E(ops[0:2])
        elif base.startswith('v_'):
            self.kind='valu'; self.dst=E(ops[0:1]); self.src=E(ops[1:])
            if base in ('v_fmac_f32','v_pk_fmac_f16','v_dot2c_f32_bf16','v_writelane_b32') or base.startswith('v_fma_mix') and base!='v_fma_mix_f32': self.src+=self.dst
            if base=='v_cndmask_b32' and len(ops)==3: self.src+=[('vcc',0)]
            if self.dpp: self.src+=self.dst
            if base in TRANS: self.kind='trans'
        elif base.startswith('buffer_') or base.startswith('global_') or base.startswith('flat_'):
            self.kind='vmem'
            islds = re.search(r'\blds\b', mods) is not None
            if islds:
                self.lds_dma=True; self.src=E(ops)+[('m0',0)]
            elif 'load' in base:
                self.dst=E(ops[0:1]); self.src=E(ops[1:])
                if 'd16' in base: self.src+=self.dst
            elif 'atomic' in base:
                self.src=E(ops)
                if 'sc0' in mods: self.dst=E(ops[0:1]) if base.startswith('buffer_') else E(ops[0:1])
            else:
                self.src=E(ops)
                if 'x4' in base or 'x3' in base:
                    self.wide_store_data = E(ops[0:1]) if base.startswith('buffer_') else E(ops[1:2])
        elif base.startswith('ds_'):
            self.kind='ds'
            if base.startswith('ds_read') or '_rtn' in base or 'permute' in base or 'swizzle' in base:
                self.dst=E(ops[0:1]); self.src=E(ops[1:])
            else:
                self.src=E(ops)
        elif base.startswith('s_'):
            self.kind='salu'
            if base in ('s_branch',) or base.startswith('s_cbranch'):
                self.branch=ops[0]; self.kind='branch'
            elif base in ('s_waitcnt','s_nop','s_barrier','s_endpgm','s_setprio','s_sleep'):
                self.kind='misc'
            elif base.startswith('s_cmp') or base.startswith('s_bitcmp'):
                self.src=E(ops)
            elif base.startswith('s_load') or base.startswith('s_buffer_load') or base=='s_memtime' or base=='s_memrealtime':
                self.kind='smem'; self.dst=E(ops[0:1]); self.src=E(ops[1:])
            else:
                self.dst=E(ops[0:1]); self.src=E(ops[1:])
                if 'saveexec' in base: self.dst+=[('exec',0)]; self.src+=[('exec',0)]
        else:
            raise ValueError("unknown instr: "+text)

class Asm:
    def __init__(self):
        self.lines=[]
    def __call__(self, s):
        for ln in s.split('\n'):
            ln=ln.rstrip()
            if ln.strip()=='' : continue
            self.lines.append(ln.strip())
    def label(self, name): self.lines.append(name+':')
    def comment(self, c): self.lines.append('; '+c)

    @staticmethod
    def _need(st, ins):
        need=0
        def chk(key, n):
            nonlocal need
            if key in st:
                need=max(need, n-st[key])
        k=ins.kind
        if k in ('comment','label'): return 0
        vs=[r for r in ins.src if r[0] in 'va']
        vd=[r for r in ins.dst if r[0] in 'va']
        ss=[r for r in ins.src if r[0] in ('s','vcc')]
        if k=='mfma':
            for r in ins.src:
                chk(('valu_w',r),2)
            for r in ins.srcAB:
                for p in (4,8): chk(('mfma_w',r,p), {4:8,8:12}[p])
            for p in (4,8):
                for r in ins.srcC:
                    if ('mfma_w',r,p) in st:
                        exact = st.get(('mfma_wd',r,p),None)
                        if exact==(tuple(ins.srcC)) and p==ins.passes: pass
                        else: chk(('mfma_w',r,p), {4:8,8:12}[p])
                for r in ins.dst:
                    if ('mfma_w',r,p) in st:
                        exact = st.get(('mfma_wd',r,p),None)
                        if exact==(tuple(ins.dst)) and p==ins.passes and tuple(ins.dst)==tuple(ins.srcC): pass
                        elif exact==(tuple(ins.dst)) and p==ins.passes: chk(('mfma_w',r,p), {4:8,8:12}[p])
                        else: chk(('mfma_w',r,p), {4:8,8:12}[p])
            chk(('valu_exec',),4)
        if k in ('valu','trans','vmem','ds'):
            for r in vs+vd:
                for p in (4,8): chk(('mfma_w',r,p), {4:8,8:12}[p])
        if k in ('valu','trans'):
            for r in vd:
                for p in (4,8): chk(('mfma_c',r,p), {4:3,8:7}[p])
                chk(('wstore',r),2)
            for r in vs:
                chk(('trans_w',r),1) if k=='valu' else None
            for r in ins.src:
                if r[0] in ('s','vcc'): chk(('valu_sw',r),2)
            if ins.dpp:
                for r in vs: chk(('valu_w',r),2)
                chk(('valu_exec',),5)
            if ins.op.startswith('v_readlane') or ins.op.startswith('v_readfirstlane'):
                for r in vs: chk(('valu_w',r),1)
                for r in ss: chk(('valu_sw',r),4)
                chk(('valu_exec',),4)
            if ins.op.startswith('v_writelane'):
                for r in ss: chk(('valu_sw',r),4)
            if ins.op.startswith('v_permlane'):
                for r in vs: chk(('valu_w',r),2)
        if k in ('vmem','ds'):
            for r in vd:
                chk(('wstore',r),1)
                for p in (4,8): chk(('mfma_c',r,p), {4:3,8:7}[p])
        if k=='vmem':
            for r in ss: chk(('valu_sw',r),5)
            if ins.lds_dma: chk(('salu_m0',),1)
        if k in ('salu','branch','smem'):
            for r in ss: chk(('valu_sw',r),1)
            if ins.op.startswith('s_cbranch_vcc'): chk(('valu_sw',('vcc',0)),1)
        return need
    @staticmethod
    def _advance(st, ins, n=1):
        k=ins.kind if ins is not None else 'misc'
        if k in ('comment','label'): return st
        ns={}
        for key,age in st.items():
            if key[0]=='mfma_wd': ns[key]=age; continue
            if age+n<24: ns[key]=age+n
        for key in list(ns):
            if key[0]=='mfma_wd' and ('mfma_w',key[1],key[2]) not in ns: del ns[key]
        if ins is None: return ns
        for r in ins.dst:
            for key in [('valu_w',r),('trans_w',r),('valu_sw',r)]:
                ns.pop(key,None)
            if k!='mfma':
                for p in (4,8):
                    ns.pop(('mfma_w',r,p),None); ns.pop(('mfma_wd',r,p),None)
        if k in ('valu','trans'):
            for r in ins.dst:
                if r[0] in 'va':
                    ns[('valu_w',r)]=0
                    if k=='trans': ns[('trans_w',r)]=0
                elif r[0] in ('s','vcc'): ns[('valu_sw',r)]=0
                elif r[0]=='exec': ns[('valu_exec',)]=0
        if k=='mfma':
            for r in ins.dst:
                for p in (4,8):
                    ns.pop(('mfma_w',r,p),None); ns.pop(('mfma_wd',r,p),None)
                ns[('mfma_w',r,ins.passes)]=0
                ns[('mfma_wd',r,ins.passes)]=tuple(ins.dst)
            for r in ins.srcC: ns[('mfma_c',r,ins.passes)]=0
        if k=='salu':
            if ('m0',0) in ins.dst: ns[('salu_m0',)]=0
        if k=='vmem':
            for r in ins.wide_store_data: ns[('wstore',r)]=0
        return ns
    @staticmethod
    def _merge(a,b):
        o=dict(a)
        for key,age in b.items():
            if key[0]=='mfma_wd':
                if key in o and o[key]!=age: o[key]=('X',)
                elif key not in o: o[key]=age
            else:
                o[key]=min(o.get(key,99),age)
        return o
    def finalize(self):
        ins=[Ins(l) for l in self.lines]
        entry={}
        for it in range(3):
            out=[]; st={}
            for i in ins:
                if i.kind=='label':
                    if i.label in entry: st=self._merge(st,entry[i.label])
                    out.append(i.text); continue
                if i.kind=='comment':
                    out.append(i.text); continue
                if i.op=='s_nop':
                    n=int(i.text.split(';')[0].split()[1],0)+1
                    st=self._advance(st,None,n); out.append(i.text); continue
                need=self._need(st,i)
                while need>0:
                    n=min(need,16)
                    out.append('s_nop %d'%(n-1)); st=self._advance(st,None,n); need-=n
                out.append(i.text)
                st=self._advance(st,i)
                if i.branch:
                    entry[i.branch]=self._merge(entry.get(i.branch,{}),st)
                    if i.op=='s_branch': st={}
                if i.op=='s_endpgm': st={}
        return '\n'.join(('  '+l if not l.endswith(':') else l) for l in out)+'\n'
```

```python
from asmgen import Asm
N=10000; E=160000; NB=250; NPB=40; P=64; EPP=2500; CAP=32
WS_B=0; WS_B_SIZE=N*512
WS_CELL=0x500000
WS_HDR=0xCD0000
WS_OVC=0xCE0000
WS_OVF=0xD00000
WS_IMG=0x1000000
IMG_W1=WS_IMG; IMG_WH1=WS_IMG+131072; IMG_WH2=WS_IMG+262144; IMG_W3=WS_IMG+393216
WS_END=WS_IMG+393216+8192
LOG2E=1.4426950408889634; LN2=0.6931471805599453
import struct
def f2u(x): return struct.unpack('<I',struct.pack('<f',x))[0]
K1_NPROD=P; K1_NGEMM=158; K1_NIMG=25
K1_GRID=K1_NPROD+K1_NGEMM+K1_NIMG
K1_LDS=131072

def srd(a, d, base, nbytes):
    a(f"s_mov_b32 s{d}, s{base}")
    a(f"s_and_b32 s{d+1}, s{base+1}, 0xffff")
    a(f"s_mov_b32 s{d+2}, {nbytes}")
    a(f"s_mov_b32 s{d+3}, 0x00020000")

def gen_k1(name):
    a=Asm()
    a(f"s_cmp_ge_u32 s2, {K1_GRID}")
    a(f"s_cbranch_scc1 K1_END")
    a("s_load_dwordx16 s[4:19], s[0:1], 0")
    a("s_load_dwordx2 s[24:25], s[0:1], 80")
    a(f"s_cmp_ge_u32 s2, {K1_NPROD}")
    a("s_cbranch_scc1 K1_NOTPROD")
    a("v_lshlrev_b32 v1, 2, v0")
    a("v_mov_b32 v2, 0")
    a("ds_write_b32 v1, v2")
    a("s_mul_i32 s44, s2, 10000")
    a("s_movk_i32 s45, 4096")
    a("s_movk_i32 s46, 8192")
    a("v_add_u32 v3, s44, v1")
    a("s_waitcnt lgkmcnt(0)")
    srd(a,28,12,E*4)
    srd(a,32,10,E*4)
    srd(a,36,6,N*6)
    srd(a,40,24,WS_IMG)
    D=lambda j: 10+j
    S=lambda j: 15+j
    for j in range(5):
        so = ['0','0','s45','s45','s46'][j]; off=[0,2048,0,2048,0][j]
        a(f"buffer_load_dword v{D(j)}, v3, s[28:31], {so} offen offset:{off}")
        a(f"buffer_load_dword v{S(j)}, v3, s[32:35], {so} offen offset:{off}")
    a("s_barrier")
    a("v_mov_b32 v4, 1")
    a("v_cmp_gt_u32 vcc, 452, v0")
    a("s_mov_b64 s[48:49], vcc")
    B=lambda j: 20+j; DL=lambda j: 25+j; R=lambda j: 30+j
    PD=lambda j: 36+2*j; PS=lambda j: 46+2*j; SHD=lambda j: 56+j; SHS=lambda j: 61+j
    for j in range(5):
        a(f"s_waitcnt vmcnt({8-2*j})")
        a(f"v_mul_u32_u24 v{B(j)}, 52429, v{D(j)}")
        a(f"v_mul_u32_u24 v5, 6, v{D(j)}")
        a(f"v_mul_u32_u24 v6, 6, v{S(j)}")
        a(f"v_lshrrev_b32 v{B(j)}, 21, v{B(j)}")
        a(f"v_and_b32 v{SHD(j)}, 2, v5")
        a(f"v_and_b32 v{SHS(j)}, 2, v6")
        a(f"v_and_b32 v5, -4, v5")
        a(f"v_and_b32 v6, -4, v6")
        a(f"v_mul_u32_u24 v7, 40, v{B(j)}")
        a(f"v_sub_u32 v{DL(j)}, v{D(j)}, v7")
        if j==4:
            a(f"v_mov_b32 v8, 255")
            a(f"v_cndmask_b32 v{B(j)}, v8, v{B(j)}, s[48:49]")
        a(f"v_lshlrev_b32 v7, 2, v{B(j)}")
        a(f"ds_add_rtn_u32 v{R(j)}, v7, v4")
        a(f"v_mov_b32 v{66+2*j}, v5")
        a(f"v_mov_b32 v{67+2*j}, v6")
    for j in range(5):
        a(f"buffer_load_dwordx2 v[{PD(j)}:{PD(j)+1}], v{66+2*j}, s[36:39], 0 offen")
        a(f"buffer_load_dwordx2 v[{PS(j)}:{PS(j)+1}], v{67+2*j}, s[36:39], 0 offen")
    a("s_lshl_b32 s50, s2, 8")
    a(f"s_add_u32 s50, s50, {WS_CELL}")
    a("s_mul_i32 s51, s2, 2500")
    a("s_mul_i32 s52, s2, 40000")
    a(f"s_add_u32 s52, s52, {WS_OVF}")
    a("s_waitcnt lgkmcnt(0)")
    W0=lambda j: 76+4*j
    AD=lambda j: 96+j
    for j in range(5):
        a(f"v_lshlrev_b32 v{W0(j)}, 9, v{S(j)}")
        a(f"v_lshl_or_b32 v{W0(j)}, v{DL(j)}, 24, v{W0(j)}")
        a(f"v_add_u32 v{W0(j)+1}, s51, v0")
        if j: a(f"v_add_u32 v{W0(j)+1}, {512*j}, v{W0(j)+1}")
        a(f"v_lshlrev_b32 v{W0(j)+1}, 5, v{W0(j)+1}")
        a(f"v_lshl_or_b32 v{W0(j)+1}, v{B(j)}, 24, v{W0(j)+1}")
        a(f"v_and_b32 v5, 16, v{R(j)}")
        a(f"v_lshlrev_b32 v5, 10, v5")
        a(f"v_lshl_add_u32 v5, v{B(j)}, 15, v5")
        a(f"v_and_b32 v6, 15, v{R(j)}")
        a(f"v_lshl_add_u32 v5, v6, 4, v5")
        a(f"v_add_u32 v{AD(j)}, s50, v5")
        a(f"v_cmp_le_u32 vcc, 32, v{R(j)}")
        if j==4:
            a("s_and_b64 vcc, vcc, s[48:49]")
        a("s_and_saveexec_b64 s[54:55], vcc")
        a(f"s_cbranch_execz K1P_NOOVF{j}")
        a("v_mov_b32 v5, 1024")
        a("ds_add_rtn_u32 v6, v5, v4")
        a("s_waitcnt lgkmcnt(0)")
        a(f"v_lshlrev_b32 v6, 4, v6")
        a(f"v_add_u32 v{AD(j)}, s52, v6")
        a.label(f"K1P_NOOVF{j}")
        a("s_mov_b64 exec, s[54:55]")
        if j==4:
            a("v_mov_b32 v5, 0x7ffffff0")
            a(f"v_cndmask_b32 v{AD(j)}, v5, v{AD(j)}, s[48:49]")
    a("s_mov_b32 s56, 0xffff0000")
    for j in range(5):
        a(f"s_waitcnt vmcnt({8-j})")
        d0,d1=PD(j),PD(j)+1; s0,s1=PS(j),PS(j)+1
        a(f"v_alignbyte_b32 v5, v{d1}, v{d0}, v{SHD(j)}")
        a(f"v_alignbyte_b32 v6, v{d1}, v{d1}, v{SHD(j)}")
        a(f"v_alignbyte_b32 v7, v{s1}, v{s0}, v{SHS(j)}")
        a(f"v_alignbyte_b32 v8, v{s1}, v{s1}, v{SHS(j)}")
        a("v_lshlrev_b32 v101, 16, v5")
        a("v_and_b32 v102, s56, v5")
        a("v_lshlrev_b32 v103, 16, v6")
        a("v_lshlrev_b32 v104, 16, v7")
        a("v_and_b32 v105, s56, v7")
        a("v_lshlrev_b32 v106, 16, v8")
        a("v_sub_f32 v101, v101, v104")
        a("v_sub_f32 v102, v102, v105")
        a("v_sub_f32 v103, v103, v106")
        a(f"v_cvt_pk_bf16_f32 v{W0(j)+2}, v101, v102")
        a("v_cvt_pk_bf16_f32 v5, v103, v103")
        a(f"v_lshlrev_b32 v101, 16, v{W0(j)+2}")
        a(f"v_and_b32 v102, s56, v{W0(j)+2}")
        a("v_lshlrev_b32 v103, 16, v5")
        a("v_mul_f32 v104, v101, v101")
        a("v_mul_f32 v105, v102, v102")
        a("v_mul_f32 v106, v103, v103")
        a("v_cvt_pk_bf16_f32 v5, v104, v105")
        a("v_cvt_pk_bf16_f32 v6, v106, v106")
        a("v_lshlrev_b32 v104, 16, v5")
        a("v_and_b32 v105, s56, v5")
        a("v_lshlrev_b32 v106, 16, v6")
        a("v_add_f32 v104, v104, v105")
        a("v_add_f32 v104, v104, v106")
        a(f"v_cvt_pk_bf16_f32 v{W0(j)+3}, v103, v104")
        a(f"buffer_store_dwordx4 v[{W0(j)}:{W0(j)+3}], v{AD(j)}, s[40:43], 0 offen")
    a("s_waitcnt lgkmcnt(0)")
    a("s_barrier")
    a("ds_read_b32 v5, v1")
    a("s_lshl_b32 s50, s2, 2")
    a(f"s_add_u32 s51, s50, {WS_HDR}")
    a(f"s_add_u32 s52, s50, {WS_OVC}")
    a("v_lshlrev_b32 v6, 8, v0")
    a("v_add_u32 v6, s51, v6")
    a("v_mov_b32 v7, 0x7ffffff0")
    a("v_cmp_gt_u32 vcc, 250, v0")
    a("v_cndmask_b32 v6, v7, v6, vcc")
    a("v_mov_b32 v7, s52")
    a("v_cmp_eq_u32 vcc, 256, v0")
    a("v_cndmask_b32 v6, v6, v7, vcc")
    a("s_waitcnt lgkmcnt(0)")
    a("buffer_store_dword v5, v6, s[40:43], 0 offen")
    a("s_endpgm")
    a.label("K1_NOTPROD")
    a(f"s_cmp_ge_u32 s2, {K1_NPROD+K1_NGEMM}")
    a("s_cbranch_scc1 K1_IMG")
    a(f"s_sub_u32 s26, s2, {K1_NPROD}")
    a("s_lshr_b32 s27, s26, 1")
    a("s_and_b32 s26, s26, 1")
    a("v_lshrrev_b32 v1, 6, v0")
    a("v_and_b32 v2, 63, v0")
    a("v_readfirstlane_b32 s44, v1")
    a("v_and_b32 v3, 31, v2")
    a("v_lshrrev_b32 v4, 5, v2")
    a("s_waitcnt lgkmcnt(0)")
    srd(a,28,4,N*512)
    srd(a,32,14,529*512)
    srd(a,36,24,WS_B_SIZE)
    a("v_xor_b32 v5, v3, v4")
    a("v_lshlrev_b32 v5, 4, v5")
    a("v_lshl_or_b32 v5, v4, 9, v5")
    a("s_lshl_b32 s45, s27, 16")
    a("s_lshl_b32 s46, s44, 13")
    a("s_add_u32 s45, s45, s46")
    for j in range(8):
        a(f"v_xor_b32 v6, {j<<5}, v5")
        a(f"s_add_u32 s47, s45, {j*1024}")
        a(f"s_add_u32 m0, s46, {j*1024}")
        a(f"buffer_load_dwordx4 v6, s[28:31], s47 offen lds")
    a("s_and_b32 s48, s44, 3")
    a("s_lshr_b32 s49, s44, 2")
    a("s_lshl_b32 s50, s26, 1")
    a("s_add_u32 s50, s50, s49")
    a("v_lshlrev_b32 v7, 12, v4")
    a("v_lshl_add_u32 v7, v3, 2, v7")
    a("s_lshl_b32 s51, s50, 7")
    a("v_add_u32 v7, s51, v7")
    a("s_lshl_b32 s52, s48, 15")
    a(f"s_add_u32 s52, s52, {256*512}")
    X=lambda ks,j: 16+ks*8+j
    for ks in range(4):
        a(f"s_add_u32 s53, s52, {ks*8192}")
        for j in range(8):
            a(f"buffer_load_dword v{X(ks,j)}, v7, s[32:35], s53 offen offset:{j*512}")
    a("s_mov_b32 s54, 0x05040100")
    a("s_mov_b32 s55, 0x07060302")
    a("v_lshlrev_b32 v8, 4, v2")
    a("s_lshl_b32 s56, s49, 15")
    a("s_lshl_b32 s57, s48, 13")
    a("s_add_u32 s56, s56, s57")
    a("s_add_u32 s56, s56, 65536")
    a("v_add_u32 v9, s56, v8")
    for ks in range(4):
        a(f"s_waitcnt vmcnt({24-8*ks})")
        for q in range(4):
            a(f"v_perm_b32 v{48+q}, v{X(ks,2*q+1)}, v{X(ks,2*q)}, s54")
            a(f"v_perm_b32 v{52+q}, v{X(ks,2*q+1)}, v{X(ks,2*q)}, s55")
        a(f"ds_write_b128 v9, v[48:51] offset:{ks*2048}")
        a(f"ds_write_b128 v9, v[52:55] offset:{ks*2048+1024}")
    a("s_waitcnt vmcnt(0) lgkmcnt(0)")
    a("s_barrier")
    a("v_and_b32 v10, 15, v3")
    a("v_xor_b32 v10, v10, v4")
    a("v_lshlrev_b32 v10, 4, v10")
    a("v_lshl_add_u32 v10, v3, 9, v10")
    a("s_lshl_b32 s57, s48, 14")
    a("v_add_u32 v10, s57, v10")
    a("s_lshl_b32 s56, s49, 15")
    a("s_add_u32 s56, s56, 65536")
    a("v_add_u32 v11, s56, v8")
    ACL=64; ACH=80
    FR=lambda g: 16+12*(g%4)
    def rd(ks):
        f=FR(ks)
        a(f"v_xor_b32 v12, {ks<<5}, v10")
        a(f"ds_read_b128 v[{f}:{f+3}], v12")
        a(f"ds_read_b128 v[{f+4}:{f+7}], v11 offset:{ks*2048}")
        a(f"ds_read_b128 v[{f+8}:{f+11}], v11 offset:{ks*2048+1024}")
    for ks in range(3): rd(ks)
    for ks in range(16):
        if ks+3<16:
            rd(ks+3); a("s_waitcnt lgkmcnt(9)")
        else:
            a(f"s_waitcnt lgkmcnt({3*(15-ks)})")
        f=FR(ks)
        cl = '0' if ks==0 else f"v[{ACL}:{ACL+15}]"
        ch = '0' if ks==0 else f"v[{ACH}:{ACH+15}]"
        a(f"v_mfma_f32_32x32x16_bf16 v[{ACL}:{ACL+15}], v[{f}:{f+3}], v[{f+4}:{f+7}], {cl}")
        a(f"v_mfma_f32_32x32x16_bf16 v[{ACH}:{ACH+15}], v[{f}:{f+3}], v[{f+8}:{f+11}], {ch}")
    a(f"s_mov_b32 s58, {f2u(-LOG2E)}")
    a("s_mov_b32 s59, 0x7f7fffff")
    a("s_mov_b32 s60, 0xffff0000")
    a("s_mov_b32 s61, 0x80000000")
    a("v_lshlrev_b32 v13, 11, v4")
    a("v_lshl_add_u32 v13, v3, 2, v13")
    a("s_lshl_b32 s62, s27, 16")
    a("s_lshl_b32 s63, s48, 14")
    a("s_add_u32 s62, s62, s63")
    a("s_lshl_b32 s63, s50, 7")
    a("s_add_u32 s62, s62, s63")
    for r in range(16):
        lo=ACL+r; hi=ACH+r
        a(f"v_mul_f32 v16, s58, v{lo}")
        a(f"v_mul_f32 v17, s58, v{hi}")
        a(f"v_cvt_pk_bf16_f32 v18, v16, v16")
        a(f"v_and_b32 v19, 0x7fffffff, v17")
        a(f"v_and_b32 v18, 0xffff, v18")
        a(f"v_add_u32 v19, 0x8000, v19")
        a(f"v_sub_u32 v19, v19, v18")
        a(f"v_med3_i32 v19, v19, 0, s59")
        a(f"v_and_or_b32 v19, v19, s60, v18")
        t=20+(r%4)
        a(f"v_and_or_b32 v{t}, v17, s61, v19")
        if r%4==0:
            a(f"s_add_u32 s63, s62, {(r>>2)*4096}")
        a(f"buffer_store_dword v{t}, v13, s[36:39], s63 offen offset:{(r&3)*512}")
    a("s_endpgm")
    a.label("K1_IMG")
    a(f"s_sub_u32 s26, s2, {K1_NPROD+K1_NGEMM}")
    a("s_lshr_b32 s27, s26, 3")
    a("s_and_b32 s28, s26, 7")
    a("s_waitcnt lgkmcnt(0)")
    srd(a,40,24,WS_END)
    a("v_and_b32 v1, 63, v0")
    a("v_bfe_u32 v2, v0, 6, 3")
    a("v_and_b32 v3, 15, v1")
    a("v_lshrrev_b32 v4, 4, v1")
    a("s_cmp_eq_u32 s27, 3")
    a("s_cbranch_scc1 K1I_W3")
    a("s_cmp_eq_u32 s27, 0")
    a("s_cbranch_scc1 K1I_W1")
    srd(a,32,18,512*512)
    a("s_cmp_eq_u32 s27, 1")
    a("s_cbranch_scc1 K1I_WH1")
    a("v_lshrrev_b32 v5, 1, v2")
    a("v_lshlrev_b32 v5, 6, v5")
    a("v_lshl_add_u32 v5, v4, 4, v5")
    a("v_and_b32 v6, 1, v2")
    a("v_add3_u32 v5, v5, v6, 0")
    a("v_add_u32 v5, 256, v5")
    a("s_movk_i32 s44, 1024")
    a(f"s_mov_b32 s45, {f2u(-LN2)}")
    a(f"s_mov_b32 s46, {IMG_WH2}")
    a("s_branch K1I_COLNAT")
    a.label("K1I_WH1")
    a("v_lshlrev_b32 v5, 5, v2")
    a("v_lshl_add_u32 v5, v4, 3, v5")
    a("s_movk_i32 s44, 512")
    a("s_mov_b32 s45, 1.0")
    a(f"s_mov_b32 s46, {IMG_WH1}")
    a.label("K1I_COLNAT")
    a("s_lshl_b32 s47, s28, 5")
    a("v_add_u32 v6, s47, v3")
    a("v_lshlrev_b32 v6, 1, v6")
    a("v_lshl_add_u32 v7, v5, 9, v6")
    a("v_add_u32 v8, 32, v7")
    a("s_branch K1I_GO")
    a.label("K1I_W1")
    srd(a,32,14,529*512)
    a("v_lshlrev_b32 v5, 5, v2")
    a("v_lshl_add_u32 v5, v4, 3, v5")
    a("s_movk_i32 s44, 512")
    a("s_mov_b32 s45, 1.0")
    a(f"s_mov_b32 s46, {IMG_W1}")
    a("s_lshr_b32 s47, s28, 1")
    a("s_lshl_b32 s47, s47, 6")
    a("s_and_b32 s48, s28, 1")
    a("s_add_u32 s47, s47, s48")
    a("v_lshl_add_u32 v6, v3, 1, s47")
    a("v_lshlrev_b32 v6, 1, v6")
    a("v_lshl_add_u32 v7, v5, 9, v6")
    a("v_add_u32 v8, 64, v7")
    a("s_branch K1I_GO")
    a.label("K1I_W3")
    srd(a,32,14,529*512)
    a("v_and_b32 v3, 31, v1")
    a("v_lshrrev_b32 v4, 5, v1")
    a("v_lshlrev_b32 v5, 3, v4")
    a("v_add_u32 v5, 513, v5")
    a("v_lshrrev_b32 v6, 7, v0")
    a("v_lshlrev_b32 v6, 6, v6")
    a("v_lshl_add_u32 v6, v3, 1, v6")
    a("v_bfe_u32 v9, v0, 6, 1")
    a("v_add_u32 v6, v6, v9")
    a("v_lshlrev_b32 v6, 1, v6")
    a("v_lshl_add_u32 v7, v5, 9, v6")
    a("v_mov_b32 v8, 0x7ffffff0")
    a("s_movk_i32 s44, 512")
    a(f"s_mov_b32 s45, {f2u(-LOG2E)}")
    a(f"s_mov_b32 s46, {IMG_W3}")
    a("s_mov_b32 s28, 0")
    a.label("K1I_GO")
    a("s_mov_b32 s47, 0")
    for j in range(8):
        a(f"buffer_load_ushort v{16+j}, v7, s[32:35], s47 offen")
        a(f"buffer_load_ushort v{24+j}, v8, s[32:35], s47 offen")
        a("s_add_u32 s47, s47, s44")
    a("s_lshl_b32 s48, s28, 14")
    a("s_add_u32 s48, s48, s46")
    a("v_lshlrev_b32 v10, 4, v0")
    a("v_add_u32 v10, s48, v10")
    a("v_add_u32 v11, 8192, v10")
    a("s_cmp_eq_u32 s27, 3")
    a("s_cselect_b32 s49, 0x7ffffff0, 0")
    a("v_or_b32 v11, s49, v11")
    a("s_waitcnt vmcnt(0)")
    for u in range(2):
        for j in range(8):
            r=16+8*u+j
            a(f"v_lshlrev_b32 v{r}, 16, v{r}")
            a(f"v_mul_f32 v{r}, s45, v{r}")
        for q in range(4):
            a(f"v_cvt_pk_bf16_f32 v{32+4*u+q}, v{16+8*u+2*q}, v{16+8*u+2*q+1}")
        a(f"buffer_store_dwordx4 v[{32+4*u}:{35+4*u}], v{10+u}, s[40:43], 0 offen")
    a.label("K1_END")
    a("s_endpgm")
    return a
```

```python
from asmgen import Asm
from k1 import *
TCAP=24
MI_STR=544
L_LUT=0
L_S2=512
L_MI=L_S2+(TCAP+4)*2048
L_POS=L_MI+64*MI_STR
L_CNT=L_POS+4096
L_OVM=L_CNT+248
ZERO_BEG=L_S2; ZERO_END=L_CNT+256
L_AT=ZERO_END
L_HT=(L_AT+20480+511)//512*512
L_OFF=L_HT+20480
L_EI=L_OFF+TCAP*128
L_WXF=L_EI+TCAP*256
K2_LDS=L_WXF+512
NZ=(ZERO_END-ZERO_BEG+16383)//16384
assert ZERO_BEG+NZ*16384 <= L_HT, (ZERO_BEG+NZ*16384, L_HT)
assert L_HT+48*512 <= K2_LDS
assert K2_LDS<=163840
PADOFF=0x500000
V_S2A=0; V_HH16=1; V_LOFF=2; V_WD=3; V_EIA=4; V_INF=5; V_TA=6; V_TB=7
W3L=8; W3H=12; ATL=16; ATH=20; X1=24; X2=28; S2A=32; T=36; G=44; L=60; H=76; D2L=92; D2H=108
V_PP=124; V_TID=125; V_LANE=126; V_TMP=127
def vr(b,n=4): return f"v[{b}:{b+n-1}]"
S_WAVE=52; S_W=53; S_SUB=54; S_G1=56; S_N=60; S_T=61; S_TL=62; S_TE=63; S_CUR=64; S_ATG=65; S_RB=66
S_V0=76; S_V1=78; S_FIRST=80; S_OVM=82; S_OCH=84; S_OCN=85; S_OP=86; S_RB0=87; S_RB1=88; S_CONT=89
S_GB=92; S_STR=93; S_NXT=94; S_PER=95; S_PG=96

def gen_k2(dbg=False, abl=()):
    a=Asm()
    def stamp(i):
        if not dbg: return
        a(f"s_memtime s[90:91]")
        a("s_waitcnt lgkmcnt(0)")
        a(f"v_writelane_b32 v{V_TMP}, s90, {i}")
    def stamp_out():
        if not dbg: return
        a(f"s_cmp_eq_u32 s2, {dbg-1}")
        a(f"s_cbranch_scc0 K2_STX")
        a(f"v_mbcnt_lo_u32_b32 v{V_LANE}, -1, 0")
        a(f"v_mbcnt_hi_u32_b32 v{V_LANE}, -1, v{V_LANE}")
        a(f"s_lshl_b32 s90, s{S_WAVE}, 6")
        a(f"v_lshl_add_u32 v{V_LANE}, v{V_LANE}, 2, s90")
        a(f"s_mov_b64 exec, 0xffff")
        a(f"global_store_dword v{V_LANE}, v{V_TMP}, s[22:23]")
        a(f"s_mov_b64 exec, -1")
        a.label("K2_STX")
    def pad_tables(tid16, t0):
        nthr=(TCAP*384)//16
        a(f"v_mov_b32 v{t0}, {PADOFF}")
        a(f"v_mov_b32 v{t0+1}, {15<<5}")
        a(f"v_mov_b32 v{t0+2}, {PADOFF}")
        a(f"v_mov_b32 v{t0+3}, {15<<5}")
        a(f"v_add_u32 v{t0+4}, {L_EI}, v{tid16}")
        a(f"v_cmp_gt_u32 vcc, {TCAP*16}, v{V_TID}")
        a("s_and_saveexec_b64 s[70:71], vcc")
        a(f"ds_write_b128 v{t0+4}, {vr(t0)}")
        a("s_mov_b64 exec, s[70:71]")
        a(f"v_mov_b32 v{t0+1}, {PADOFF}")
        a(f"v_mov_b32 v{t0+3}, {PADOFF}")
        a(f"v_add_u32 v{t0+4}, {L_OFF}, v{tid16}")
        a(f"v_cmp_gt_u32 vcc, {TCAP*8}, v{V_TID}")
        a("s_and_saveexec_b64 s[70:71], vcc")
        a(f"ds_write_b128 v{t0+4}, {vr(t0)}")
        a("s_mov_b64 exec, s[70:71]")
    def zero_region(tid16, t0, beg, n16k):
        for i in range(4): a(f"v_mov_b32 v{t0+i}, 0")
        a(f"v_add_u32 v{t0+4}, {beg}, v{tid16}")
        for k in range(n16k):
            if k==3: a(f"v_add_u32 v{t0+4}, {3*16384}, v{t0+4}")
            a(f"ds_write_b128 v{t0+4}, {vr(t0)} offset:{(k%3)*16384}")
    a(f"s_cmp_ge_u32 s2, {NB}")
    a("s_cbranch_scc1 K2_END")
    a("s_load_dwordx2 s[24:25], s[0:1], 80")
    a("s_load_dwordx16 s[4:19], s[0:1], 0")
    a("s_load_dwordx4 s[20:23], s[0:1], 64")
    a(f"v_mov_b32 v{V_TID}, v0")
    a(f"v_and_b32 v{V_LANE}, 63, v0")
    a("v_lshrrev_b32 v120, 6, v0")
    a(f"v_readfirstlane_b32 s{S_WAVE}, v120")
    a(f"v_lshlrev_b32 v121, 4, v{V_TID}")
    a(f"v_lshrrev_b32 v120, 4, v{V_TID}")
    a("v_lshlrev_b32 v120, 2, v120")
    a("s_lshl_b32 s55, s2, 8")
    a(f"s_add_u32 s55, s55, {WS_HDR}")
    a(f"s_lshl_b32 s{S_RB0}, s2, 15")
    a(f"s_add_u32 s{S_RB0}, s{S_RB0}, {WS_CELL}")
    a(f"s_add_u32 s{S_RB1}, s{S_RB0}, 16384")
    a(f"s_and_b32 s{S_W}, s{S_WAVE}, 3")
    a(f"s_lshr_b32 s{S_SUB}, s{S_WAVE}, 2")
    a(f"v_and_b32 v110, 31, v{V_LANE}")
    a(f"v_lshrrev_b32 v111, 5, v{V_LANE}")
    a("s_waitcnt lgkmcnt(0)")
    stamp(0)
    srd(a,40,24,WS_END)
    a("buffer_load_dword v108, v120, s[40:43], s55 offen")
    a(f"buffer_load_dwordx4 v[100:103], v121, s[40:43], s{S_RB0} offen")
    a(f"buffer_load_dwordx4 v[104:107], v121, s[40:43], s{S_RB1} offen")
    srd(a,28,4,N*512)
    a(f"s_mul_i32 s55, s{S_WAVE}, 3")
    a("v_add_u32 v112, s55, v111")
    a("v_and_b32 v113, 15, v112")
    a("v_xor_b32 v113, v113, v110")
    a("v_lshlrev_b32 v113, 4, v113")
    a("v_lshl_or_b32 v113, v111, 9, v113")
    a("s_mul_i32 s56, s2, 40")
    a("s_add_u32 s56, s56, s55")
    a("s_lshl_b32 s56, s56, 9")
    a("s_lshl_b32 s57, s55, 9")
    a("v_cmp_gt_u32 vcc, 40, v112")
    a("s_and_saveexec_b64 s[70:71], vcc")
    a("s_cbranch_execz K2_NOHT")
    a(f"s_add_u32 m0, s57, {L_HT}")
    a("buffer_load_dwordx4 v113, s[28:31], s56 offen lds")
    a("s_cmp_ge_u32 s55, 38")
    a("s_cbranch_scc1 K2_NOHT")
    a("s_add_u32 s58, s55, 2")
    a("s_and_b32 s58, s58, 15")
    a("v_xor_b32 v114, s58, v110")
    a("v_lshlrev_b32 v114, 4, v114")
    a("s_add_u32 s56, s56, 1024")
    a(f"s_add_u32 m0, s57, {L_HT+1024}")
    a("s_mov_b64 exec, 0xffffffff")
    a("buffer_load_dwordx4 v114, s[28:31], s56 offen lds")
    a.label("K2_NOHT")
    a("s_mov_b64 exec, -1")
    zero_region(121, 92, ZERO_BEG, NZ)
    pad_tables(121, 92)
    a(f"v_lshrrev_b32 v112, 1, v{V_TID}")
    a(f"v_and_b32 v113, 1, v{V_TID}")
    a("v_lshlrev_b32 v113, 3, v113")
    a("v_sub_u32 v112, v112, v113")
    a("v_lshrrev_b32 v113, 1, v112")
    a("v_and_b32 v114, 1, v112")
    a("v_lshlrev_b32 v114, 4, v114")
    a("v_mov_b32 v115, 0x3f80")
    a("v_lshlrev_b32 v115, v114, v115")
    for q in range(4):
        a(f"v_cmp_eq_u32 vcc, {q}, v113")
        a(f"v_cndmask_b32 v{92+q}, 0, v115, vcc")
    a(f"v_cmp_eq_u32 vcc, 31, v{V_TID}")
    a("v_cndmask_b32 v95, v95, 0, vcc")
    a(f"v_cmp_gt_u32 vcc, 32, v{V_TID}")
    a("s_and_saveexec_b64 s[70:71], vcc")
    a("ds_write_b128 v121, v[92:95]")
    a("s_mov_b64 exec, s[70:71]")
    a(f"v_lshlrev_b32 v122, 4, v{V_LANE}")
    a(f"s_lshl_b32 s55, s{S_WAVE}, 13")
    a(f"s_add_u32 s55, s55, {IMG_W1}")
    WF=60
    for ks in range(8):
        if ks==4: a("s_add_u32 s55, s55, 4096")
        a(f"buffer_load_dwordx4 {vr(WF+4*ks)}, v122, s[40:43], s55 offen offset:{(ks%4)*1024}")
    a(f"s_lshl_b32 s55, s{S_W}, 11")
    a(f"s_add_u32 s55, s55, {IMG_W3}")
    a(f"buffer_load_dwordx4 {vr(W3L)}, v122, s[40:43], s55 offen")
    a(f"buffer_load_dwordx4 {vr(W3H)}, v122, s[40:43], s55 offen offset:1024")
    a(f"v_lshlrev_b32 v{V_HH16}, 4, v111")
    a(f"s_lshl_b32 s55, s{S_W}, 7")
    a(f"v_lshl_add_u32 v{V_LOFF}, v110, 2, s55")
    srd(a,48,14,529*512)
    a(f"s_mov_b32 s56, {512*512}")
    a(f"buffer_load_dword v{V_WD}, v{V_LOFF}, s[48:51], s56 offen")
    srd(a,72,16,512)
    a(f"v_and_b32 v115, 0xc0, v{V_TID}")
    a("v_lshl_add_u32 v115, v110, 1, v115")
    a(f"v_bfe_u32 v116, v{V_TID}, 5, 1")
    a("v_add_u32 v115, v115, v116")
    a("v_lshlrev_b32 v115, 1, v115")
    a("v_mov_b32 v117, 0x7ffffff0")
    a(f"v_cmp_gt_u32 vcc, 256, v{V_TID}")
    a("v_cndmask_b32 v115, v117, v115, vcc")
    a("buffer_load_ushort v118, v115, s[72:75], 0 offen")
    NLOADS_AFTER_REC = 0+8+2+1+1
    srd(a,32,8,E*32)
    srd(a,36,24,WS_B_SIZE)
    srd(a,44,20,2590000*2)
    a(f"v_lshrrev_b32 v119, 6, v{V_TID}")
    a("v_lshlrev_b32 v119, 7, v119")
    a("v_lshl_add_u32 v119, v116, 6, v119")
    a("v_lshrrev_b32 v117, 4, v110")
    a("v_lshl_add_u32 v119, v117, 5, v119")
    a("v_bfe_u32 v117, v110, 2, 1")
    a("v_lshl_add_u32 v119, v117, 4, v119")
    a("v_and_b32 v117, 3, v110")
    a("v_lshl_add_u32 v119, v117, 1, v119")
    a("v_bfe_u32 v117, v110, 3, 1")
    a("v_lshl_add_u32 v119, v117, 3, v119")
    a(f"v_add_u32 v119, {L_WXF}, v119")
    a(f"v_lshlrev_b32 v{V_S2A}, 10, v111")
    a(f"v_lshl_add_u32 v{V_S2A}, v110, 4, v{V_S2A}")
    a(f"v_add_u32 v{V_S2A}, {L_S2}, v{V_S2A}")
    a("v_bfe_u32 v117, v110, 2, 1")
    a(f"v_lshlrev_b32 v{V_EIA}, 4, v117")
    a("v_and_b32 v117, 3, v110")
    a(f"v_add_u32 v{V_EIA}, v{V_EIA}, v117")
    a("v_lshrrev_b32 v117, 3, v110")
    a(f"v_lshl_add_u32 v{V_EIA}, v117, 2, v{V_EIA}")
    a(f"v_lshlrev_b32 v{V_EIA}, 3, v{V_EIA}")
    a(f"v_add_u32 v{V_EIA}, {L_EI}, v{V_EIA}")
    a("s_waitcnt lgkmcnt(0)")
    a("s_barrier")
    stamp(1)
    a(f"s_waitcnt vmcnt({NLOADS_AFTER_REC})")
    a(f"v_and_b32 v109, 15, v{V_TID}")
    a(f"v_cmp_lt_u32 s[{S_V0}:{S_V0+1}], v109, v108")
    a("v_add_u32 v109, 16, v109")
    a(f"v_cmp_lt_u32 s[{S_V1}:{S_V1+1}], v109, v108")
    a("v_cmp_lt_u32 vcc, 32, v108")
    a("s_and_saveexec_b64 s[70:71], vcc")
    a("s_cbranch_execz K2_NOOV")
    a(f"v_lshrrev_b32 v109, 4, v{V_TID}")
    a("v_mov_b32 v120, 1")
    a("v_mov_b32 v121, 0")
    a("v_lshlrev_b64 v[120:121], v109, v[120:121]")
    a(f"v_mov_b32 v109, {L_OVM}")
    a("ds_or_b64 v109, v[120:121]")
    a.label("K2_NOOV")
    a("s_mov_b64 exec, s[70:71]")
    a(f"s_mov_b32 s{S_FIRST}, 1")
    a(f"s_mov_b64 s[{S_OVM}:{S_OVM+1}], 0")
    a(f"s_mov_b32 s{S_OCH}, 0")
    a(f"s_mov_b32 s{S_OCN}, 0")
    a(f"s_mov_b32 s{S_OP}, 0")
    stamp(2)
    a.label("K2_BATCH")
    a("v_mov_b32 v109, 1")
    a("v_bfe_u32 v110, v100, 24, 6")
    a("v_bfe_u32 v111, v104, 24, 6")
    a("v_lshlrev_b32 v112, 2, v110")
    a("v_lshlrev_b32 v113, 2, v111")
    a(f"v_add_u32 v116, {L_CNT}, v112")
    a(f"v_add_u32 v117, {L_CNT}, v113")
    a(f"s_mov_b64 exec, s[{S_V0}:{S_V0+1}]")
    a("ds_add_rtn_u32 v114, v116, v109")
    a(f"s_mov_b64 exec, s[{S_V1}:{S_V1+1}]")
    a("ds_add_rtn_u32 v115, v117, v109")
    a("s_mov_b64 exec, -1")
    a("s_waitcnt lgkmcnt(0)")
    a("s_barrier")
    stamp(3)
    a(f"v_lshlrev_b32 v116, 2, v{V_LANE}")
    a(f"v_add_u32 v116, {L_CNT}, v116")
    a("ds_read_b32 v117, v116")
    a(f"v_mov_b32 v120, {L_OVM}")
    a("ds_read_b64 v[120:121], v120")
    a(f"v_cmp_gt_u32 vcc, 40, v{V_LANE}")
    a("s_waitcnt lgkmcnt(0)")
    a("v_cndmask_b32 v117, 0, v117, vcc")
    a("v_mov_b32 v122, v117")
    for sh in (1,2,4,8):
        a(f"v_add_u32_dpp v122, v122, v122 row_shr:{sh} row_mask:0xf bank_mask:0xf bound_ctrl:0")
    a("v_add_u32_dpp v122, v122, v122 row_bcast:15 row_mask:0xa bank_mask:0xf")
    a("v_add_u32_dpp v122, v122, v122 row_bcast:31 row_mask:0xc bank_mask:0xf")
    a("v_sub_u32 v123, v122, v117")
    a(f"s_cmp_eq_u32 s{S_FIRST}, 0")
    a("s_cbranch_scc1 K2_NOMASK")
    a(f"v_readfirstlane_b32 s{S_OVM}, v120")
    a(f"v_readfirstlane_b32 s{S_OVM+1}, v121")
    a.label("K2_NOMASK")
    for g in range(4): a(f"v_readlane_b32 s{S_G1+g}, v123, {8*(g+1)}")
    a(f"v_readlane_b32 s{S_N}, v122, 39")
    def gbcalc(dst, src):
        a(f"v_cmp_le_u32 vcc, s{S_G1}, v{src}")
        a(f"v_cndmask_b32 v{dst}, 0, 1, vcc")
        for g in range(1,4):
            a(f"v_cmp_le_u32 vcc, s{S_G1+g}, v{src}")
            a(f"v_addc_co_u32 v{dst}, vcc, 0, v{dst}, vcc")
    a("v_and_b32 v120, -32, v123")
    gbcalc(121,120)
    a("v_lshlrev_b32 v121, 3, v121")
    a(f"v_sub_u32 v121, v{V_LANE}, v121")
    a("v_cmp_lt_i32 vcc, 14, v121")
    a("v_cmp_lt_u32 s[70:71], 0, v117")
    a("s_and_b64 vcc, vcc, s[70:71]")
    a("s_cbranch_vccz K2_DENSE")
    AG=[None,97,98,99,100]
    a(f"s_add_u32 s97, s{S_G1}, 31")
    a("s_and_b32 s97, s97, -32")
    for g in range(2,5):
        a(f"s_sub_u32 s{AG[g]}, s{S_G1+g-1}, s{S_G1+g-2}")
        a(f"s_add_u32 s{AG[g]}, s{AG[g]}, 31")
        a(f"s_and_b32 s{AG[g]}, s{AG[g]}, -32")
        a(f"s_add_u32 s{AG[g]}, s{AG[g]}, s{AG[g-1]}")
    a(f"s_sub_u32 s{S_N}, s{S_N}, s{S_G1+3}")
    a(f"s_add_u32 s{S_N}, s{S_N}, s100")
    for g in range(1,5):
        a(f"s_sub_u32 s69, s{AG[g]}, s{S_G1+g-1}")
        a(f"v_mov_b32 v120, s69")
        a(f"v_cmp_le_u32 vcc, {8*g}, v{V_LANE}")
        if g==1: a(f"v_cndmask_b32 v121, 0, v120, vcc")
        else:    a(f"v_cndmask_b32 v121, v121, v120, vcc")
    a("v_add_u32 v123, v123, v121")
    a(f"v_and_b32 v121, 7, v{V_LANE}")
    for g in range(1,5): a(f"s_mov_b32 s{S_G1+g-1}, s{AG[g]}")
    a.label("K2_DENSE")
    a("v_and_b32 v121, 15, v121")
    a("v_lshl_or_b32 v123, v121, 16, v123")
    a(f"s_add_u32 s{S_T}, s{S_N}, 31")
    a(f"s_lshr_b32 s{S_T}, s{S_T}, 5")
    a("ds_bpermute_b32 v120, v112, v123")
    a("ds_bpermute_b32 v121, v113, v123")
    a("s_waitcnt lgkmcnt(0)")
    def mkpos(stv, rank, dl, outpos, outrel):
        a(f"v_and_b32 v122, 0xffff, v{stv}")
        a(f"v_add_u32 v{outpos}, v122, v{rank}")
        a(f"v_xor_b32 v122, v122, v{outpos}")
        a(f"v_lshrrev_b32 v{outrel}, 16, v{stv}")
        a(f"v_and_b32 v123, 7, v{dl}")
        a(f"v_cmp_gt_u32 vcc, 32, v122")
        a(f"v_cndmask_b32 v{outrel}, v123, v{outrel}, vcc")
    mkpos(120,114,110,114,116)
    mkpos(121,115,111,115,117)
    a("v_and_b32 v114, 0xfff, v114")
    a("v_and_b32 v115, 0xfff, v115")
    a(f"v_lshl_or_b32 v{V_PP}, v116, 12, v114")
    a("v_lshl_or_b32 v122, v117, 12, v115")
    a(f"v_lshl_or_b32 v{V_PP}, v122, 16, v{V_PP}")
    a(f"s_mov_b32 s{S_RB}, 0")
    stamp(4)
    a(f"s_cmp_lg_u32 s{S_FIRST}, 0")
    a("s_cbranch_scc1 K2_CLEAN")
    a.label("K2_ROUND")
    a(f"v_mbcnt_lo_u32_b32 v{V_LANE}, -1, 0")
    a(f"v_mbcnt_hi_u32_b32 v{V_LANE}, -1, v{V_LANE}")
    a(f"s_lshl_b32 s55, s{S_WAVE}, 6")
    a(f"v_add_u32 v{V_TID}, s55, v{V_LANE}")
    a(f"v_lshlrev_b32 v121, 4, v{V_TID}")
    a(f"buffer_load_dwordx4 v[100:103], v121, s[40:43], s{S_RB0} offen")
    a(f"buffer_load_dwordx4 v[104:107], v121, s[40:43], s{S_RB1} offen")
    NZS=((TCAP+4)*2048+16383)//16384
    zero_region(121, 92, L_S2, 3)
    a(f"v_add_u32 v96, {L_S2+3*16384}, v121")
    a(f"v_cmp_gt_u32 vcc, {((TCAP+4)*2048-3*16384)//16}, v{V_TID}")
    a("s_and_saveexec_b64 s[70:71], vcc")
    a("ds_write_b128 v96, v[92:95]")
    a("s_mov_b64 exec, s[70:71]")
    pad_tables(121, 92)
    a("s_waitcnt vmcnt(0) lgkmcnt(0)")
    a("v_bfe_u32 v110, v100, 24, 6")
    a("v_bfe_u32 v111, v104, 24, 6")
    a(f"v_and_b32 v114, 0xfff, v{V_PP}")
    a(f"v_bfe_u32 v116, v{V_PP}, 12, 4")
    a(f"v_bfe_u32 v115, v{V_PP}, 16, 12")
    a(f"v_lshrrev_b32 v117, 28, v{V_PP}")
    a("s_barrier")
    a.label("K2_CLEAN")
    a("s_mov_b32 s67, 0xffffff")
    a("s_mov_b32 s68, 0xffff0000")
    a(f"s_lshl_b32 s69, s{S_RB}, 5")
    def write_rec(rec, dl, pos, rel, valid, tag):
        w0,w1,w2,w3=rec,rec+1,rec+2,rec+3
        P,AD,A2,VAL,INF,SL,ONE,DLT=24,25,26,28,29,30,31,32
        a(f"v_subrev_u32 v{P}, s69, v{pos}")
        a(f"v_cmp_gt_u32 vcc, {TCAP*32}, v{P}")
        a(f"s_and_b64 vcc, vcc, s[{valid}:{valid+1}]")
        a("s_and_saveexec_b64 s[70:71], vcc")
        a(f"s_cbranch_execz K2_WR{tag}")
        a(f"v_lshlrev_b32 v{AD}, 2, v{P}")
        a(f"v_and_b32 v{A2}, s67, v{w0}")
        a(f"v_add_u32 v{AD}, {L_OFF}, v{AD}")
        a(f"ds_write_b32 v{AD}, v{A2}")
        a(f"v_and_b32 v{VAL}, s67, v{w1}")
        a(f"v_lshlrev_b32 v{INF}, 5, v{rel}")
        a(f"v_and_or_b32 v{INF}, v{w3}, s68, v{INF}")
        a(f"v_lshlrev_b32 v{AD}, 3, v{P}")
        a(f"v_add_u32 v{AD}, {L_EI}, v{AD}")
        a(f"ds_write_b64 v{AD}, v[{VAL}:{INF}]")
        a(f"v_lshrrev_b32 v{AD}, 3, v{P}")
        a(f"v_lshlrev_b32 v{AD}, 9, v{AD}")
        a(f"v_and_b32 v{A2}, 7, v{P}")
        a(f"v_lshl_add_u32 v{AD}, v{A2}, 1, v{AD}")
        a(f"v_and_b32 v{SL}, 7, v{rel}")
        a(f"v_lshl_add_u32 v{AD}, v{SL}, 6, v{AD}")
        a(f"v_lshrrev_b32 v{DLT}, 3, v{dl}")
        a(f"v_lshrrev_b32 v{A2}, 5, v{P}")
        a(f"v_sub_u32 v{DLT}, v{DLT}, v{A2}")
        a(f"v_add_u32 v{DLT}, {TCAP-1}, v{DLT}")
        a(f"v_lshlrev_b32 v{DLT}, 11, v{DLT}")
        a(f"v_cmp_lt_u32 vcc, 7, v{rel}")
        a(f"v_cndmask_b32 v{DLT}, 0, v{DLT}, vcc")
        a(f"v_add_u32 v{AD}, v{AD}, v{DLT}")
        a(f"v_mov_b32 v{ONE}, 0x3f80")
        a(f"ds_write_b16 v{AD}, v{ONE} offset:{L_S2}")
        a(f"ds_write_b16 v{AD}, v{w2} offset:{L_S2+16}")
        a(f"ds_write_b16_d16_hi v{AD}, v{w2} offset:{L_S2+32}")
        a(f"ds_write_b16 v{AD}, v{w3} offset:{L_S2+48}")
        a.label(f"K2_WR{tag}")
        a("s_mov_b64 exec, s[70:71]")
    write_rec(100,110,114,116,S_V0,'A')
    write_rec(104,111,115,117,S_V1,'B')
    a(f"s_cmp_eq_u32 s{S_FIRST}, 0")
    a("s_cbranch_scc1 K2_NOWX")
    a("s_waitcnt vmcnt(0)")
    a(f"v_cmp_gt_u32 vcc, 256, v{V_TID}")
    a("s_and_saveexec_b64 s[70:71], vcc")
    a("ds_write_b16 v119, v118")
    a("s_mov_b64 exec, s[70:71]")
    a(f"s_mov_b32 s55, {f2u(-LOG2E)}")
    a(f"v_lshlrev_b32 v116, 16, v{V_WD}")
    a(f"v_and_b32 v117, 0xffff0000, v{V_WD}")
    a("v_mul_f32 v116, s55, v116")
    a("v_mul_f32 v117, s55, v117")
    a(f"v_cvt_pk_bf16_f32 v{V_WD}, v116, v117")
    a.label("K2_NOWX")
    a("s_waitcnt lgkmcnt(0)")
    a("s_barrier")
    stamp(5)
    a(f"s_sub_u32 s55, s{S_T}, s{S_RB}")
    a(f"s_min_u32 s55, s55, {TCAP}")
    a(f"s_add_u32 s{S_PER}, s55, 3")
    a(f"s_lshr_b32 s{S_PER}, s{S_PER}, 2")
    a(f"s_mul_i32 s{S_TL}, s{S_PER}, s{S_SUB}")
    a(f"s_add_u32 s{S_TE}, s{S_TL}, s{S_PER}")
    a(f"s_min_u32 s{S_TE}, s{S_TE}, s55")
    a(f"s_min_u32 s{S_TL}, s{S_TL}, s55")
    def issue_loads(tll):
        a(f"s_lshl_b32 s67, s{tll}, 7")
        a(f"s_add_u32 s68, s67, {L_OFF}")
        a(f"v_lshl_add_u32 v{V_TA}, v{V_HH16}, 2, s68")
        for q in range(4): a(f"ds_read_b128 {vr(G+4*q)}, v{V_TA} offset:{16*q}")
        a(f"s_lshl_b32 s68, s{tll}, 8")
        a(f"v_add_u32 v{V_TB}, s68, v{V_EIA}")
        a(f"ds_read_b64 v[{V_EIA}:{V_INF}], v{V_TB}") if False else None
        a(f"ds_read_b64 v[{V_TA}:{V_TB}], v{V_TB}")
    def issue_loads2():
        for q in range(8):
            a(f"v_pk_add_f32 v[{G+2*q}:{G+2*q+1}], v[{G+2*q}:{G+2*q+1}], v[{V_LOFF}:{V_LOFF+1}] op_sel_hi:[1,0]")
        a(f"v_add_u32 v{V_TA}, v{V_TA}, v{V_HH16}")
        a(f"v_mov_b32 v{V_INF}, v{V_TB}")
        if 'noload' not in abl:
            for r in range(16): a(f"buffer_load_dword v{G+r}, v{G+r}, s[36:39], 0 offen")
        a(f"buffer_load_dwordx4 {vr(X1)}, v{V_TA}, s[32:35], 0 offen")
    issue_loads(S_TL)
    a("s_waitcnt lgkmcnt(0)")
    issue_loads2()
    a(f"s_cmp_eq_u32 s{S_FIRST}, 0")
    a("s_cbranch_scc1 K2_NOAG")
    a(f"v_and_b32 v116, 15, v{V_LANE}")
    a(f"v_lshrrev_b32 v117, 4, v{V_LANE}")
    a("v_xor_b32 v118, v116, v117")
    a("v_lshlrev_b32 v118, 4, v118")
    a("v_lshl_add_u32 v118, v116, 9, v118")
    a(f"v_add_u32 v118, {L_HT}, v118")
    AF=92; AC=28
    def rdh(ks):
        a(f"v_xor_b32 v119, {ks<<6}, v118")
        for rt in range(3): a(f"ds_read_b128 {vr(AF+12*(ks%2)+4*rt)}, v119 offset:{rt*8192}")
    rdh(0)
    for ks in range(8):
        if ks<7:
            rdh(ks+1); a("s_waitcnt lgkmcnt(3)")
        else: a("s_waitcnt lgkmcnt(0)")
        for rt in range(3):
            c='0' if ks==0 else vr(AC+4*rt)
            a(f"v_mfma_f32_16x16x32_bf16 {vr(AC+4*rt)}, {vr(AF+12*(ks%2)+4*rt)}, {vr(WF+4*ks)}, {c}")
    a(f"s_lshl_b32 s55, s{S_WAVE}, 4")
    a("v_add_u32 v119, s55, v116")
    a("v_mul_u32_u24 v119, 80, v119")
    a("v_lshl_add_u32 v119, v117, 3, v119")
    a(f"v_add_u32 v119, {L_AT}, v119")
    a(f"s_mov_b32 s55, {f2u(-LOG2E)}")
    for rt in range(3):
        for r in range(4): a(f"v_mul_f32 v{AC+4*rt+r}, s55, v{AC+4*rt+r}")
        a(f"v_cvt_pk_bf16_f32 v{92+2*rt}, v{AC+4*rt}, v{AC+4*rt+1}")
        a(f"v_cvt_pk_bf16_f32 v{93+2*rt}, v{AC+4*rt+2}, v{AC+4*rt+3}")
        if rt==2: a("s_mov_b64 exec, 0xffffffff")
        a(f"ds_write_b64 v119, v[{92+2*rt}:{93+2*rt}] offset:{rt*32}")
    a("s_mov_b64 exec, -1")
    a("s_waitcnt lgkmcnt(0)")
    a("s_barrier")
    a.label("K2_NOAG")
    stamp(6)
    a(f"s_mov_b32 s{S_CUR}, -1")
    a(f"s_mov_b32 s{S_ATG}, -1")
    a(f"s_mov_b32 s{S_CONT}, -1")
    a(f"s_cmp_ge_u32 s{S_TL}, s{S_TE}")
    a("s_cbranch_scc1 K2_LOOPEND")
    a(f"s_add_u32 s55, s{S_TL}, s{S_RB}")
    a("s_lshl_b32 s55, s55, 5")
    a("s_mov_b32 s67, 0")
    a("s_mov_b32 s68, 0")
    for g in range(4):
        a(f"s_cmp_ge_u32 s55, s{S_G1+g}")
        a(f"s_cselect_b32 s68, s{S_G1+g}, s68")
        a(f"s_addc_u32 s67, s67, 0")
    a("s_cmp_lt_u32 s68, s55")
    a(f"s_cselect_b32 s{S_CONT}, s67, -1")
    a(f"s_cmp_eq_u32 s{S_SUB}, 0")
    a(f"s_cselect_b32 s{S_CONT}, -1, s{S_CONT}")
    fl=[0]
    def flush():
        fl[0]+=1; tg=f"F{fl[0]}"
        a(f"s_lshl_b32 s67, s{S_W}, 7")
        a(f"s_add_u32 s67, s67, {L_WXF}")
        a(f"v_add_u32 v{V_TA}, s67, v{V_HH16}")
        WX=[L+8,L+12,H+8,H+12]
        for i in range(4): a(f"ds_read_b128 {vr(WX[i])}, v{V_TA} offset:{32*i}")
        a(f"s_lshl_b32 s67, s{S_CUR}, 3")
        a(f"s_mov_b32 s68, s{S_CUR}")
        a(f"s_cmp_eq_u32 s{S_CUR}, s{S_CONT}")
        a(f"s_cbranch_scc0 K2_{tg}A")
        a(f"s_cmp_eq_u32 s{S_FIRST}, 0")
        a(f"s_cbranch_scc1 K2_{tg}A")
        a(f"s_lshl_b32 s67, s{S_SUB}, 3")
        a("s_add_u32 s67, s67, 32")
        a(f"s_add_u32 s68, s{S_SUB}, 4")
        a.label(f"K2_{tg}A")
        a(f"s_mul_i32 s67, s67, {MI_STR}")
        a(f"s_lshl_b32 s69, s{S_W}, 7")
        a("s_add_u32 s67, s67, s69")
        a(f"s_add_u32 s67, s67, {L_MI}")
        a(f"v_bfe_u32 v{V_TA}, v{V_LOFF}, 4, 3")
        a(f"v_mul_u32_u24 v{V_TA}, {MI_STR}, v{V_TA}")
        a(f"v_lshrrev_b32 v{V_TB}, 1, v{V_HH16}")
        a(f"v_add3_u32 v{V_TA}, v{V_TA}, v{V_TB}, s67")
        for q in range(8): a(f"v_cvt_pk_bf16_f32 v{D2L+q}, v{D2L+2*q}, v{D2L+2*q+1}")
        for q in range(7,-1,-1): a(f"v_cvt_pk_bf16_f32 v{D2H+8+q}, v{D2H+2*q}, v{D2H+2*q+1}")
        D3=D2L+8
        a("s_waitcnt lgkmcnt(0)")
        a(f"v_mfma_f32_32x32x16_bf16 {vr(D3,16)}, {vr(WX[0])}, {vr(D2L)}, 0")
        a(f"v_mfma_f32_32x32x16_bf16 {vr(D3,16)}, {vr(WX[1])}, {vr(D2L+4)}, {vr(D3,16)}")
        a(f"v_mfma_f32_32x32x16_bf16 {vr(D3,16)}, {vr(WX[2])}, {vr(D2H+8)}, {vr(D3,16)}")
        a(f"v_mfma_f32_32x32x16_bf16 {vr(D3,16)}, {vr(WX[3])}, {vr(D2H+12)}, {vr(D3,16)}")
        a("s_mov_b32 exec_lo, 0x11111111")
        a("s_mov_b32 exec_hi, 0x11111111")
        a(f"s_cmp_eq_u32 s{S_FIRST}, 0")
        a(f"s_cbranch_scc1 K2_{tg}B")
        for q in range(0,8,2):
            i=8*((2*q)>>2)
            a(f"ds_write_b64 v{V_TA}, v[{D2L+q}:{D2L+q+1}] offset:{2*i}")
            a(f"ds_write_b64 v{V_TA}, v[{D2H+8+q}:{D2H+8+q+1}] offset:{64+2*i}")
        a(f"s_branch K2_{tg}C")
        a.label(f"K2_{tg}B")
        for q in range(8):
            i=((2*q)&3)+8*((2*q)>>2)
            a(f"ds_pk_add_bf16 v{V_TA}, v{D2L+q} offset:{2*i}")
            a(f"ds_pk_add_bf16 v{V_TA}, v{D2H+8+q} offset:{64+2*i}")
        a.label(f"K2_{tg}C")
        a(f"s_lshl_b32 s67, s68, 7")
        a(f"s_mul_i32 s69, s{S_W}, {1024-128}")
        a("s_add_u32 s67, s67, s69")
        a(f"s_add_u32 s67, s67, {L_POS}")
        a("s_mov_b64 exec, 0xffffffff")
        a(f"v_add_u32 v{V_TA}, s67, v{V_LOFF}")
        a(f"s_cmp_eq_u32 s{S_FIRST}, 0")
        a(f"s_cbranch_scc1 K2_{tg}D")
        a(f"ds_write_b32 v{V_TA}, v{D3}")
        a(f"s_branch K2_{tg}E")
        a.label(f"K2_{tg}D")
        a(f"ds_add_f32 v{V_TA}, v{D3}")
        a.label(f"K2_{tg}E")
        a("s_mov_b64 exec, -1")
    a.label("K2_LOOP")
    a(f"s_add_u32 s55, s{S_TL}, s{S_RB}")
    a("s_lshl_b32 s55, s55, 5")
    a(f"s_mov_b32 s{S_GB}, 0")
    for g in range(4):
        a(f"s_cmp_ge_u32 s55, s{S_G1+g}")
        a(f"s_addc_u32 s{S_GB}, s{S_GB}, 0")
    a("s_add_u32 s55, s55, 31")
    a(f"s_sub_u32 s67, s{S_N}, 1")
    a("s_min_u32 s55, s55, s67")
    a(f"s_mov_b32 s{S_STR}, 0")
    for g in range(4):
        a(f"s_cmp_ge_u32 s55, s{S_G1+g}")
        a(f"s_addc_u32 s{S_STR}, s{S_STR}, 0")
    a(f"s_sub_u32 s{S_STR}, s{S_STR}, s{S_GB}")
    a("s_movk_i32 s67, 0x1e0")
    a(f"v_and_or_b32 v{V_TA}, v{V_INF}, s67, v{V_HH16}")
    a(f"ds_read_b128 {vr(X2)}, v{V_TA}")
    a(f"s_cmp_eq_u32 s{S_GB}, s{S_ATG}")
    a("s_cbranch_scc1 K2_ATOK")
    a(f"s_lshl_b32 s67, s{S_GB}, 4")
    a(f"s_mul_i32 s68, s{S_W}, 2560")
    a("s_add_u32 s67, s67, s68")
    a(f"s_add_u32 s67, s67, {L_AT}")
    a(f"v_mul_u32_u24 v{V_TA}, 20, v{V_LOFF}")
    a(f"v_add3_u32 v{V_TA}, v{V_TA}, v{V_HH16}, s67")
    a(f"ds_read_b128 {vr(ATL)}, v{V_TA}")
    a(f"ds_read_b128 {vr(ATH)}, v{V_TA} offset:{32*80}")
    a(f"s_mov_b32 s{S_ATG}, s{S_GB}")
    a("s_mov_b32 s67, 0x05040100")
    a("s_mov_b32 s68, 0x07060100")
    a("s_waitcnt lgkmcnt(0)")
    a("s_mov_b32 exec_lo, 0")
    a(f"v_perm_b32 v{ATL+3}, v{V_WD}, v{ATL+3}, s67")
    a(f"v_perm_b32 v{ATH+3}, v{V_WD}, v{ATH+3}, s68")
    a("s_mov_b64 exec, -1")
    a.label("K2_ATOK")
    a("s_waitcnt vmcnt(0)")
    for r in range(16): a(f"v_lshlrev_b32 v{L+r}, 16, v{G+r}")
    a("s_waitcnt lgkmcnt(0)")
    a("s_mov_b32 s67, 0xffff0000")
    a("s_mov_b32 exec_lo, 0")
    a(f"v_and_or_b32 v{X2+3}, v{V_INF}, s67, v{X2+3}")
    a("s_mov_b64 exec, -1")
    a(f"v_mfma_f32_32x32x16_bf16 {vr(H,16)}, {vr(X1)}, {vr(W3H)}, {vr(G,16)}")
    a(f"v_mfma_f32_32x32x16_bf16 {vr(L,16)}, {vr(X1)}, {vr(W3L)}, {vr(L,16)}")
    a(f"v_mfma_f32_32x32x16_bf16 {vr(H,16)}, {vr(X2)}, {vr(ATH)}, {vr(H,16)}")
    a(f"v_mfma_f32_32x32x16_bf16 {vr(L,16)}, {vr(X2)}, {vr(ATL)}, {vr(L,16)}")
    a(f"s_add_u32 s{S_NXT}, s{S_TL}, 1")
    a("s_nop 3")
    issue_loads(S_NXT)
    a(f"s_lshl_b32 s67, s{S_TL}, 11")
    a(f"v_add_u32 v{V_TMP if False else T+7}, s67, v{V_S2A}")
    a(f"ds_read_b128 {vr(S2A)}, v{T+7}")
    a(f"ds_read_b128 {vr(X2)}, v{T+7} offset:512")
    def silu(base, first):
        for c in range(2):
            y=base+8*c
            if 'notrans' not in abl:
                for j in range(8): a(f"v_exp_f32 v{T+j}, v{y+j}")
            for j in range(4): a(f"v_pk_add_f32 v[{T+2*j}:{T+2*j+1}], v[{T+2*j}:{T+2*j+1}], 1.0")
            if 'notrans' not in abl:
                for j in range(8): a(f"v_rcp_f32 v{T+j}, v{T+j}")
            for j in range(4): a(f"v_pk_mul_f32 v[{T+2*j}:{T+2*j+1}], v[{T+2*j}:{T+2*j+1}], v[{y+2*j}:{y+2*j+1}]")
            for j in range(4): a(f"v_cvt_pk_bf16_f32 v{base+4*c+j}, v{T+2*j}, v{T+2*j+1}")
            if first and c==0:
                a(f"s_cmp_ge_u32 s{S_NXT}, s{S_TE}")
                a("s_cbranch_scc1 K2_NONEXT")
                a("s_waitcnt lgkmcnt(2)")
                issue_loads2()
                a.label("K2_NONEXT")
    silu(H,True)
    silu(L,False)
    a(f"s_mov_b32 s{S_PG}, s{S_GB}")
    a.label("K2_PASS")
    a(f"s_cmp_eq_u32 s{S_PG}, s{S_CUR}")
    a("s_cbranch_scc1 K2_ACC")
    a(f"s_cmp_lt_i32 s{S_CUR}, 0")
    a("s_cbranch_scc1 K2_NOFL")
    flush()
    a.label("K2_NOFL")
    a(f"s_mov_b32 s{S_CUR}, s{S_PG}")
    a("s_waitcnt lgkmcnt(0)")
    a(f"v_mfma_f32_32x32x16_bf16 {vr(D2L,16)}, {vr(L)}, {vr(S2A)}, 0")
    a(f"v_mfma_f32_32x32x16_bf16 {vr(D2H,16)}, {vr(H)}, {vr(S2A)}, 0")
    a("s_branch K2_ACC2")
    a.label("K2_ACC")
    a("s_waitcnt lgkmcnt(0)")
    a(f"v_mfma_f32_32x32x16_bf16 {vr(D2L,16)}, {vr(L)}, {vr(S2A)}, {vr(D2L,16)}")
    a(f"v_mfma_f32_32x32x16_bf16 {vr(D2H,16)}, {vr(H)}, {vr(S2A)}, {vr(D2H,16)}")
    a.label("K2_ACC2")
    a(f"v_mfma_f32_32x32x16_bf16 {vr(D2L,16)}, {vr(L+4)}, {vr(X2)}, {vr(D2L,16)}")
    a(f"v_mfma_f32_32x32x16_bf16 {vr(D2H,16)}, {vr(H+4)}, {vr(X2)}, {vr(D2H,16)}")
    a(f"s_cmp_eq_u32 s{S_STR}, 0")
    a("s_cbranch_scc1 K2_NEXT")
    a(f"s_mov_b32 s{S_STR}, 0")
    a(f"s_add_u32 s{S_PG}, s{S_GB}, 1")
    a(f"s_add_u32 s67, s{S_GB}, {TCAP}")
    a("s_lshl_b32 s67, s67, 11")
    a(f"v_add_u32 v{T+7}, s67, v{V_S2A}")
    a("s_nop 7")
    a(f"ds_read_b128 {vr(S2A)}, v{T+7}")
    a(f"ds_read_b128 {vr(X2)}, v{T+7} offset:512")
    a("s_branch K2_PASS")
    a.label("K2_NEXT")
    a(f"s_add_u32 s{S_TL}, s{S_TL}, 1")
    a(f"s_cmp_lt_u32 s{S_TL}, s{S_TE}")
    a("s_cbranch_scc1 K2_LOOP")
    flush()
    a.label("K2_LOOPEND")
    stamp(7)
    a(f"s_cmp_eq_u32 s{S_FIRST}, 0")
    a("s_cbranch_scc1 K2_NOSAVE")
    for g in range(4): a(f"s_mov_b32 s{8+g}, s{S_G1+g}")
    a(f"s_mov_b32 s12, s{S_PER}")
    a.label("K2_NOSAVE")
    a("s_waitcnt vmcnt(0) lgkmcnt(0)")
    a(f"s_mov_b32 s{S_FIRST}, 0")
    a(f"s_add_u32 s{S_RB}, s{S_RB}, {TCAP}")
    a(f"s_cmp_lt_u32 s{S_RB}, s{S_T}")
    a("s_cbranch_scc0 K2_OVNEXT")
    a("s_barrier")
    a("s_branch K2_ROUND")
    a.label("K2_OVNEXT")
    a(f"s_lshl_b32 s55, s{S_OCH}, 11")
    a(f"s_cmp_lt_u32 s55, s{S_OCN}")
    a("s_cbranch_scc1 K2_OVGO")
    a(f"s_cmp_eq_u64 s[{S_OVM}:{S_OVM+1}], 0")
    a("s_cbranch_scc1 K2_EPI")
    a(f"s_ff1_i32_b64 s{S_OP}, s[{S_OVM}:{S_OVM+1}]")
    a(f"s_bitset0_b64 s[{S_OVM}:{S_OVM+1}], s{S_OP}")
    a(f"s_lshl_b32 s55, s{S_OP}, 2")
    a(f"s_add_u32 s55, s55, {WS_OVC}")
    a("v_mov_b32 v100, 0")
    a("buffer_load_dword v100, v100, s[40:43], s55 offen")
    a("s_waitcnt vmcnt(0)")
    a(f"v_readfirstlane_b32 s{S_OCN}, v100")
    a(f"s_min_u32 s{S_OCN}, s{S_OCN}, {EPP}")
    a(f"s_mov_b32 s{S_OCH}, 0")
    a("s_branch K2_OVNEXT")
    a.label("K2_OVGO")
    a("s_barrier")
    a(f"v_mbcnt_lo_u32_b32 v{V_LANE}, -1, 0")
    a(f"v_mbcnt_hi_u32_b32 v{V_LANE}, -1, v{V_LANE}")
    a(f"s_lshl_b32 s67, s{S_WAVE}, 6")
    a(f"v_add_u32 v{V_TID}, s67, v{V_LANE}")
    a(f"s_mul_i32 s{S_RB0}, s{S_OP}, 40000")
    a(f"s_add_u32 s{S_RB0}, s{S_RB0}, {WS_OVF}")
    a("s_lshl_b32 s67, s55, 4")
    a(f"s_add_u32 s{S_RB0}, s{S_RB0}, s67")
    a(f"s_add_u32 s{S_RB1}, s{S_RB0}, 16384")
    a(f"v_lshlrev_b32 v121, 4, v{V_TID}")
    a(f"buffer_load_dwordx4 v[100:103], v121, s[40:43], s{S_RB0} offen")
    a(f"buffer_load_dwordx4 v[104:107], v121, s[40:43], s{S_RB1} offen")
    zero_region(121, 92, L_S2, 3)
    a(f"v_add_u32 v96, {L_S2+3*16384}, v121")
    a(f"v_cmp_gt_u32 vcc, {((TCAP+4)*2048-3*16384)//16}, v{V_TID}")
    a("s_and_saveexec_b64 s[70:71], vcc")
    a("ds_write_b128 v96, v[92:95]")
    a("s_mov_b64 exec, s[70:71]")
    pad_tables(121, 92)
    a(f"v_lshlrev_b32 v120, 2, v{V_TID}")
    a(f"v_add_u32 v120, {L_CNT}, v120")
    a("v_mov_b32 v121, 0")
    a(f"v_cmp_gt_u32 vcc, 40, v{V_TID}")
    a("s_and_saveexec_b64 s[70:71], vcc")
    a("ds_write_b32 v120, v121")
    a("s_mov_b64 exec, s[70:71]")
    a(f"v_add_u32 v120, s55, v{V_TID}")
    a("v_add_u32 v121, 1024, v120")
    a("s_waitcnt vmcnt(0) lgkmcnt(0)")
    a(f"v_cmp_gt_u32 s[{S_V0}:{S_V0+1}], s{S_OCN}, v120")
    a(f"v_cmp_gt_u32 s[{S_V1}:{S_V1+1}], s{S_OCN}, v121")
    a("v_lshrrev_b32 v120, 24, v101")
    a("v_lshrrev_b32 v121, 24, v105")
    a("v_cmp_eq_u32 vcc, s2, v120")
    a(f"s_and_b64 s[{S_V0}:{S_V0+1}], s[{S_V0}:{S_V0+1}], vcc")
    a("v_cmp_eq_u32 vcc, s2, v121")
    a(f"s_and_b64 s[{S_V1}:{S_V1+1}], s[{S_V1}:{S_V1+1}], vcc")
    a(f"s_add_u32 s{S_OCH}, s{S_OCH}, 1")
    a("s_barrier")
    a("s_branch K2_BATCH2")
    a.label("K2_BATCH2")
    a("s_branch K2_BATCH")
    a.label("K2_EPI")
    a(f"v_mbcnt_lo_u32_b32 v{V_LANE}, -1, 0")
    a(f"v_mbcnt_hi_u32_b32 v{V_LANE}, -1, v{V_LANE}")
    a(f"v_lshlrev_b32 v122, 4, v{V_LANE}")
    a(f"s_lshl_b32 s55, s{S_WAVE}, 13")
    a(f"s_add_u32 s56, s55, {IMG_WH1}")
    a(f"s_add_u32 s57, s55, {IMG_WH2}")
    F1=8; F2=40
    for ks in range(8):
        if ks==4: a("s_add_u32 s56, s56, 4096")
        a(f"buffer_load_dwordx4 {vr(F1+4*ks)}, v122, s[40:43], s56 offen offset:{(ks%4)*1024}")
    for ks in range(8):
        if ks==4: a("s_add_u32 s57, s57, 4096")
        a(f"buffer_load_dwordx4 {vr(F2+4*ks)}, v122, s[40:43], s57 offen offset:{(ks%4)*1024}")
    a(f"v_and_b32 v116, 15, v{V_LANE}")
    a(f"v_lshrrev_b32 v117, 4, v{V_LANE}")
    a("v_xor_b32 v118, v116, v117")
    a("v_lshlrev_b32 v118, 4, v118")
    a("v_lshl_add_u32 v118, v116, 9, v118")
    a(f"v_add_u32 v118, {L_HT}, v118")
    a(f"v_mul_u32_u24 v119, {MI_STR}, v116")
    a("v_lshl_add_u32 v119, v117, 4, v119")
    a(f"v_add_u32 v119, {L_MI}, v119")
    XF=72; UC=96
    def rdx(step):
        ks=step%8
        if step<8:
            a(f"v_xor_b32 v120, {ks<<6}, v118")
            for ct in range(3): a(f"ds_read_b128 {vr(XF+12*(step%2)+4*ct)}, v120 offset:{ct*8192}")
        else:
            for ct in range(3): a(f"ds_read_b128 {vr(XF+12*(step%2)+4*ct)}, v119 offset:{ct*16*MI_STR+ks*64}")
    def gemm(s0):
        rdx(s0)
        for step in range(s0,s0+8):
            if step<s0+7:
                rdx(step+1); a("s_waitcnt lgkmcnt(3)")
            else: a("s_waitcnt lgkmcnt(0)")
            if step==0: a("s_waitcnt vmcnt(8)")
            if step==8: a("s_waitcnt vmcnt(0)")
            wf=(F1+4*step) if step<8 else (F2+4*(step-8))
            for ct in range(3):
                c='0' if step==0 else vr(UC+4*ct)
                a(f"v_mfma_f32_16x16x32_bf16 {vr(UC+4*ct)}, {vr(wf)}, {vr(XF+12*(step%2)+4*ct)}, {c}")
    gemm(0)
    a("s_barrier")
    stamp(8)
    a(f"s_lshl_b32 s55, s{S_WAVE}, 6")
    a(f"v_add_u32 v{V_TID}, s55, v{V_LANE}")
    a(f"v_lshrrev_b32 v120, 7, v{V_TID}")
    a(f"v_mul_u32_u24 v120, {MI_STR}, v120")
    a(f"v_and_b32 v121, 127, v{V_TID}")
    a("v_lshl_add_u32 v120, v121, 2, v120")
    a(f"v_add_u32 v120, {L_MI}, v120")
    a("s_mov_b32 s58, 0xffff0000")
    for s in range(1,4):
        a(f"s_mul_i32 s55, s12, {32*s}")
        a("s_mov_b32 s56, 0")
        for g in range(4):
            a(f"s_cmp_ge_u32 s55, s{8+g}")
            a("s_addc_u32 s56, s56, 0")
        a(f"s_mov_b32 s{59+s}, s56")
        a(f"s_mul_i32 s57, s56, {8*MI_STR}")
        a("v_add_u32 v121, s57, v120")
        a("ds_read_b32 v122, v121")
        a(f"ds_read_b32 v123, v120 offset:{(32+8*s)*MI_STR}")
        a("s_waitcnt lgkmcnt(0)")
        a("v_lshlrev_b32 v108, 16, v122")
        a("v_and_b32 v109, s58, v122")
        a("v_lshlrev_b32 v110, 16, v123")
        a("v_and_b32 v111, s58, v123")
        a("v_add_f32 v108, v108, v110")
        a("v_add_f32 v109, v109, v111")
        a("v_cvt_pk_bf16_f32 v122, v108, v109")
        a("ds_write_b32 v121, v122")
    a("s_waitcnt lgkmcnt(0)")
    a("s_barrier")
    gemm(8)
    a(f"s_lshl_b32 s55, s{S_WAVE}, 1")
    a("v_lshrrev_b32 v120, 1, v117")
    a("v_add_u32 v120, s55, v120")
    a("v_xor_b32 v120, v120, v116")
    a("v_lshlrev_b32 v120, 4, v120")
    a("v_lshl_add_u32 v120, v116, 9, v120")
    a("v_and_b32 v121, 1, v117")
    a("v_lshl_add_u32 v120, v121, 3, v120")
    a(f"v_add_u32 v120, {L_HT}, v120")
    for ct in range(3): a(f"ds_read_b64 v[{108+2*ct}:{109+2*ct}], v120 offset:{ct*8192}")
    a("s_mul_i32 s55, s2, 40")
    a("s_lshl_b32 s55, s55, 9")
    a(f"s_lshl_b32 s56, s{S_WAVE}, 5")
    a("s_add_u32 s55, s55, s56")
    a("v_lshlrev_b32 v121, 9, v116")
    a("v_lshl_add_u32 v121, v117, 3, v121")
    a(f"s_mov_b32 s56, {f2u(-LOG2E)}")
    a("s_mov_b32 s57, 0xffff0000")
    a("s_waitcnt lgkmcnt(0)")
    for ct in range(3):
        u=UC+4*ct
        for r in range(4): a(f"v_mul_f32 v{8+r}, s56, v{u+r}")
        for r in range(4): a(f"v_exp_f32 v{8+r}, v{8+r}")
        for r in range(4): a(f"v_add_f32 v{8+r}, 1.0, v{8+r}")
        for r in range(4): a(f"v_rcp_f32 v{8+r}, v{8+r}")
        for r in range(4): a(f"v_mul_f32 v{8+r}, v{8+r}, v{u+r}")
        h0,h1=108+2*ct,109+2*ct
        a(f"v_lshlrev_b32 v12, 16, v{h0}")
        a(f"v_and_b32 v13, s57, v{h0}")
        a(f"v_lshlrev_b32 v14, 16, v{h1}")
        a(f"v_and_b32 v15, s57, v{h1}")
        for r in range(4): a(f"v_add_f32 v{8+r}, v{8+r}, v{12+r}")
        a(f"v_cvt_pk_bf16_f32 v{16+2*ct}, v8, v9")
        a(f"v_cvt_pk_bf16_f32 v{17+2*ct}, v10, v11")
        if ct==2:
            a("v_cmp_gt_u32 vcc, 8, v116")
            a("s_and_saveexec_b64 s[70:71], vcc")
        a(f"s_add_u32 s58, s55, {ct*8192}")
        a(f"buffer_store_dwordx2 v[{16+2*ct}:{17+2*ct}], v121, s[44:47], s58 offen")
        if ct==2: a("s_mov_b64 exec, s[70:71]")
    stamp(9)
    stamp_out()
    a(f"s_cmp_ge_u32 s{S_WAVE}, 2")
    a("s_cbranch_scc1 K2_END")
    a(f"v_mbcnt_lo_u32_b32 v{V_LANE}, -1, 0")
    a(f"v_mbcnt_hi_u32_b32 v{V_LANE}, -1, v{V_LANE}")
    a(f"s_lshl_b32 s55, s{S_WAVE}, 6")
    a(f"v_add_u32 v8, s55, v{V_LANE}")
    a("v_mul_u32_u24 v9, 0x5556, v8")
    a("v_lshrrev_b32 v9, 16, v9")
    a("v_mul_u32_u24 v10, 3, v9")
    a("v_sub_u32 v10, v8, v10")
    a("v_lshrrev_b32 v15, 3, v9")
    a("v_and_b32 v16, 7, v9")
    a("v_lshl_add_u32 v16, v16, 2, v10")
    a("v_lshlrev_b32 v16, 2, v16")
    a(f"v_add_u32 v16, {L_POS+4}, v16")
    a("v_lshl_add_u32 v11, v15, 7, v16")
    for w in range(4): a(f"ds_read_b32 v{20+w}, v11 offset:{w*1024}")
    for s in range(1,4):
        for w in range(4): a(f"ds_read_b32 v{20+4*s+w}, v16 offset:{w*1024+(4+s)*128}")
    srd(a,48,6,N*6)
    a("s_mul_i32 s55, s2, 240")
    a("v_lshlrev_b32 v13, 1, v8")
    a("v_cmp_gt_u32 vcc, 120, v8")
    a("s_and_saveexec_b64 s[70:71], vcc")
    a("s_cbranch_execz K2_END")
    a("buffer_load_ushort v14, v13, s[48:51], s55 offen")
    a("s_waitcnt lgkmcnt(0)")
    a("v_add_f32 v20, v20, v21")
    a("v_add_f32 v22, v22, v23")
    a("v_add_f32 v12, v20, v22")
    for s in range(1,4):
        b=20+4*s
        a(f"v_add_f32 v{b}, v{b}, v{b+1}")
        a(f"v_add_f32 v{b+2}, v{b+2}, v{b+3}")
        a(f"v_add_f32 v{b}, v{b}, v{b+2}")
        a(f"v_cmp_eq_u32 vcc, s{59+s}, v15")
        a(f"v_cndmask_b32 v{b}, 0, v{b}, vcc")
        a(f"v_add_f32 v12, v12, v{b}")
    a(f"s_mov_b32 s56, {f2u(-LN2)}")
    a("s_waitcnt vmcnt(0)")
    a("v_lshlrev_b32 v14, 16, v14")
    a("v_fma_f32 v14, v12, s56, v14")
    a("v_cvt_pk_bf16_f32 v14, v14, v14")
    a(f"s_add_u32 s55, s55, {N*512}")
    a("buffer_store_short v14, v13, s[44:47], s55 offen")
    a.label("K2_END")
    a("s_endpgm")
    return a
```

```python
import sys
from k1 import *
from k2 import *
dbg = int(sys.argv[2]) if len(sys.argv)>2 else 0
abl = tuple(sys.argv[3].split(',')) if len(sys.argv)>3 else ()
out = sys.argv[1] if len(sys.argv)>1 else 'gather_scatter__cheap_equivariant_egnn__graph.s'
hdr = open('gather_scatter__cheap_equivariant_egnn__graph.s.ref').read().split('\n')
lines=[]
for l in hdr:
    if l.startswith('; @launch') or l.startswith('; Override') or l.startswith('; grid=ceil'): continue
    if l.startswith(';'): lines.append(l)
    else: break
lines.append(f"; @launch kernel=egnn_k1_kernel grid=({K1_GRID},1,1) block=(512,1,1) lds={K1_LDS}")
lines.append(f"; @launch kernel=egnn_k2_kernel grid=({NB},1,1) block=(1024,1,1) lds={K2_LDS}")
lines.append('.amdgcn_target "amdgcn-amd-amdhsa--gfx950"')
lines.append('.text')
def kern(name, a):
    return f".globl {name}\n.p2align 8\n.type {name},@function\n{name}:\n" + a.finalize()
body = kern("egnn_k1_kernel", gen_k1("k1")) + kern("egnn_k2_kernel", gen_k2(dbg,abl))
def desc(name, vg, sg):
    return f""".p2align 6
.amdhsa_kernel {name}
  .amdhsa_next_free_vgpr {vg}
  .amdhsa_next_free_sgpr {sg}
  .amdhsa_accum_offset {vg}
  .amdhsa_group_segment_fixed_size 0
  .amdhsa_kernarg_size 88
  .amdhsa_user_sgpr_count 2
  .amdhsa_user_sgpr_kernarg_segment_ptr 1
  .amdhsa_system_sgpr_workgroup_id_x 1
  .amdhsa_float_denorm_mode_32 3
.end_amdhsa_kernel
"""
txt = '\n'.join(lines)+'\n'+body+'.section .rodata,"a"\n'+desc("egnn_k1_kernel",128,102)+desc("egnn_k2_kernel",128,102)
open(out,'w').write(txt)
print("wrote",out,len(txt))
```

```python
from asmgen import Asm
import struct
N=10000; E=160000; NB=250; NPB=40; P=64; EPP=2500; CAP=32
WS_B=0; WS_B_SIZE=N*512
WS_CELL=0x500000
CELL_B=32768
WS_HDR=0xCD0000
WS_OVC=0xCE0000
WS_OVF=0xD00000
WS_IMG=0x1000000
IMG_W1=WS_IMG; IMG_WH1=WS_IMG+131072; IMG_WH2=WS_IMG+262144; IMG_W3=WS_IMG+393216
WS_END=WS_IMG+393216+8192
LOG2E=1.4426950408889634; LN2=0.6931471805599453
def f2u(x): return struct.unpack('<I',struct.pack('<f',x))[0]
K1_NPROD=P; K1_NGEMM=158; K1_NIMG=25
K1_GRID=K1_NPROD+K1_NGEMM+K1_NIMG
K1_LDS=131072+4096

def srd(a, d, base, nbytes, off=0):
    if off:
        a(f"s_add_u32 s{d}, s{base}, {off}")
        a(f"s_addc_u32 s{d+1}, s{base+1}, 0")
        a(f"s_and_b32 s{d+1}, s{d+1}, 0xffff")
    else:
        a(f"s_mov_b32 s{d}, s{base}")
        a(f"s_and_b32 s{d+1}, s{base+1}, 0xffff")
    a(f"s_mov_b32 s{d+2}, {nbytes}")
    a(f"s_mov_b32 s{d+3}, 0x00020000")

def gen_k1(name, dbg=0, abl=()):
    a=Asm()
    SF=''
    for f in ('sc0','sc1','nt'):
        if 'st_'+f in abl: SF+=' '+f
    def rt_end():
        if not dbg: return
        a("s_mov_b32 s26, s94")
        a("s_waitcnt vmcnt(0)")
        a("s_memrealtime s[90:91]")
        a("s_waitcnt lgkmcnt(0)")
        a("v_mov_b32 v8, s26")
        a("v_mov_b32 v9, s90")
        a("s_lshl_b32 s90, s2, 3")
        a("s_add_u32 s90, s90, 0x2001000")
        a("v_mov_b32 v10, s90")
        a("v_cmp_eq_u32 vcc, 0, v0")
        a("s_and_saveexec_b64 s[92:93], vcc")
        a("global_store_dwordx2 v10, v[8:9], s[24:25]")
    a(f"s_cmp_ge_u32 s2, {K1_GRID}")
    a(f"s_cbranch_scc1 K1_END")
    if dbg: a("s_memrealtime s[94:95]")
    a("s_load_dwordx16 s[4:19], s[0:1], 0")
    a("s_load_dwordx2 s[24:25], s[0:1], 80")
    a(f"s_cmp_ge_u32 s2, {K1_NPROD}")
    a("s_cbranch_scc1 K1_NOTPROD")
    LC=0; CB=4096
    a("v_lshlrev_b32 v1, 2, v0")
    a("v_mov_b32 v2, 0")
    a("ds_write_b32 v1, v2")
    a("s_mul_i32 s44, s2, 10000")
    a("s_movk_i32 s45, 4096")
    a("s_movk_i32 s46, 8192")
    a("v_add_u32 v3, s44, v1")
    a("s_waitcnt lgkmcnt(0)")
    srd(a,28,12,E*4)
    srd(a,32,10,E*4)
    D=lambda j: 10+j
    S=lambda j: 15+j
    for j in range(5):
        so = ['0','0','s45','s45','s46'][j]; off=[0,2048,0,2048,0][j]
        a(f"buffer_load_dword v{D(j)}, v3, s[28:31], {so} offen offset:{off}")
        a(f"buffer_load_dword v{S(j)}, v3, s[32:35], {so} offen offset:{off}")
    srd(a,36,6,N*6)
    srd(a,40,24,WS_IMG)
    a("s_barrier")
    a("v_mov_b32 v4, 1")
    a("v_cmp_gt_u32 vcc, 452, v0")
    a("s_mov_b64 s[48:49], vcc")
    B=lambda j: 20+j; R=lambda j: 30+j
    PD=lambda j: 36+2*j; PS=lambda j: 46+2*j; SHD=lambda j: 56+j; SHS=lambda j: 61+j
    W0=lambda j: 76+4*j
    a("s_mul_i32 s51, s2, 2500")
    for j in range(5):
        a(f"s_waitcnt vmcnt({8-2*j+2*j})") if False else None
        a(f"s_waitcnt vmcnt(8)")
        a(f"v_mul_u32_u24 v5, 6, v{D(j)}")
        a(f"v_mul_u32_u24 v6, 6, v{S(j)}")
        a(f"v_and_b32 v{SHD(j)}, 2, v5")
        a(f"v_and_b32 v{SHS(j)}, 2, v6")
        a(f"v_and_b32 v5, -4, v5")
        a(f"v_and_b32 v6, -4, v6")
        a(f"buffer_load_dwordx2 v[{PD(j)}:{PD(j)+1}], v5, s[36:39], 0 offen")
        a(f"buffer_load_dwordx2 v[{PS(j)}:{PS(j)+1}], v6, s[36:39], 0 offen")
        a(f"v_mul_u32_u24 v{B(j)}, 52429, v{D(j)}")
        a(f"v_lshrrev_b32 v{B(j)}, 21, v{B(j)}")
        a(f"v_mul_u32_u24 v7, 40, v{B(j)}")
        a(f"v_sub_u32 v7, v{D(j)}, v7")
        a(f"v_lshlrev_b32 v{W0(j)}, 9, v{S(j)}")
        a(f"v_lshl_or_b32 v{W0(j)}, v7, 24, v{W0(j)}")
        a(f"v_or_b32 v{W0(j)}, v{W0(j)}, v{B(j)}")
        a(f"v_add_u32 v{W0(j)+1}, s51, v0")
        if j: a(f"v_add_u32 v{W0(j)+1}, {512*j}, v{W0(j)+1}")
        a(f"v_lshlrev_b32 v{W0(j)+1}, 5, v{W0(j)+1}")
        if j==4:
            a(f"v_mov_b32 v8, 255")
            a(f"v_cndmask_b32 v{B(j)}, v8, v{B(j)}, s[48:49]")
        a(f"v_lshlrev_b32 v7, 2, v{B(j)}")
        a(f"ds_add_rtn_u32 v{R(j)}, v7, v4")
    a("s_mul_i32 s52, s2, 40000")
    a(f"s_add_u32 s52, s52, {WS_OVF}")
    a("s_mov_b32 s56, 0xffff0000")
    for j in range(5):
        a(f"s_waitcnt vmcnt({8-2*j})")
        d0,d1=PD(j),PD(j)+1; s0,s1=PS(j),PS(j)+1
        a(f"v_alignbyte_b32 v5, v{d1}, v{d0}, v{SHD(j)}")
        a(f"v_alignbyte_b32 v6, v{d1}, v{d1}, v{SHD(j)}")
        a(f"v_alignbyte_b32 v7, v{s1}, v{s0}, v{SHS(j)}")
        a(f"v_alignbyte_b32 v8, v{s1}, v{s1}, v{SHS(j)}")
        a("v_lshlrev_b32 v101, 16, v5")
        a("v_and_b32 v102, s56, v5")
        a("v_lshlrev_b32 v103, 16, v6")
        a("v_lshlrev_b32 v104, 16, v7")
        a("v_and_b32 v105, s56, v7")
        a("v_lshlrev_b32 v106, 16, v8")
        a("v_sub_f32 v101, v101, v104")
        a("v_sub_f32 v102, v102, v105")
        a("v_sub_f32 v103, v103, v106")
        a(f"v_cvt_pk_bf16_f32 v{W0(j)+2}, v101, v102")
        a("v_cvt_pk_bf16_f32 v5, v103, v103")
        a(f"v_lshlrev_b32 v101, 16, v{W0(j)+2}")
        a(f"v_and_b32 v102, s56, v{W0(j)+2}")
        a("v_lshlrev_b32 v103, 16, v5")
        a("v_mul_f32 v104, v101, v101")
        a("v_mul_f32 v105, v102, v102")
        a("v_mul_f32 v106, v103, v103")
        a("v_cvt_pk_bf16_f32 v5, v104, v105")
        a("v_cvt_pk_bf16_f32 v6, v106, v106")
        a("v_lshlrev_b32 v104, 16, v5")
        a("v_and_b32 v105, s56, v5")
        a("v_lshlrev_b32 v106, 16, v6")
        a("v_add_f32 v104, v104, v105")
        a("v_add_f32 v104, v104, v106")
        a(f"v_cvt_pk_bf16_f32 v{W0(j)+3}, v103, v104")
        if j==0: a("s_waitcnt lgkmcnt(0)")
        a(f"v_lshlrev_b32 v5, 9, v{B(j)}")
        a(f"v_lshl_add_u32 v5, v{R(j)}, 4, v5")
        a(f"v_add_u32 v5, {CB}, v5")
        a(f"v_cmp_gt_u32 vcc, 32, v{R(j)}")
        a("s_and_saveexec_b64 s[54:55], vcc")
        a(f"ds_write_b128 v5, v[{W0(j)}:{W0(j)+3}]")
        a("s_andn2_b64 exec, s[54:55], exec")
        if j==4: a("s_and_b64 exec, exec, s[48:49]")
        a(f"s_cbranch_execz K1P_NOOVF{j}")
        a(f"v_mov_b32 v5, {LC+1024}")
        a("ds_add_rtn_u32 v6, v5, v4")
        a("s_waitcnt lgkmcnt(0)")
        a(f"v_lshlrev_b32 v6, 4, v6")
        a(f"buffer_store_dwordx4 v[{W0(j)}:{W0(j)+3}], v6, s[40:43], s52 offen")
        a.label(f"K1P_NOOVF{j}")
        a("s_mov_b64 exec, s[54:55]")
    a("s_waitcnt lgkmcnt(0)")
    a("s_barrier")
    a("v_lshrrev_b32 v5, 4, v0")
    a("v_and_b32 v6, 15, v0")
    a("v_lshlrev_b32 v7, 9, v5")
    a("v_lshl_add_u32 v7, v6, 4, v7")
    a(f"v_add_u32 v7, {CB}, v7")
    a("v_lshlrev_b32 v8, 2, v5")
    a("v_add_u32 v53, 65536, v7")
    for it in range(8):
        src="v7" if it<4 else "v53"
        a(f"ds_read_b128 v[{12+4*it}:{15+4*it}], {src} offset:{(it%4)*16384}")
    for it in range(8): a(f"ds_read_b32 v{44+it}, v8 offset:{it*128}")
    a("ds_read_b32 v52, v1")
    a("v_lshlrev_b32 v9, 15, v5")
    a("v_lshl_add_u32 v9, v6, 4, v9")
    a("s_lshl_b32 s50, s2, 8")
    a(f"s_add_u32 s50, s50, {WS_CELL}")
    for it in range(8):
        a(f"s_waitcnt lgkmcnt({min(15,16-it)})")
        a(f"s_add_u32 s53, s50, {it*32*CELL_B}")
        if it==7:
            a("v_cmp_gt_u32 vcc, 26, v5")
            a("s_and_saveexec_b64 s[54:55], vcc")
        a(f"buffer_store_dwordx4 v[{12+4*it}:{15+4*it}], v9, s[40:43], s53 offen"+SF)
        if it==7: a("s_mov_b64 exec, s[54:55]")
    a("s_waitcnt lgkmcnt(0)")
    for it in range(8):
        a(f"v_cmp_lt_u32 vcc, 16, v{44+it}")
        if it==7:
            a("v_cmp_gt_u32 s[56:57], 26, v5")
            a("s_and_b64 vcc, vcc, s[56:57]")
        a("s_and_saveexec_b64 s[54:55], vcc")
        a(f"s_cbranch_execz K1P_NO2{it}")
        src="v7" if it<4 else "v53"
        a(f"ds_read_b128 v[56:59], {src} offset:{(it%4)*16384+256}")
        a(f"s_add_u32 s53, s50, {it*32*CELL_B+16384}")
        a("s_waitcnt lgkmcnt(0)")
        a(f"buffer_store_dwordx4 v[56:59], v9, s[40:43], s53 offen")
        a.label(f"K1P_NO2{it}")
        a("s_mov_b64 exec, s[54:55]")
    a("s_lshl_b32 s50, s2, 2")
    a(f"s_add_u32 s51, s50, {WS_HDR}")
    a(f"s_add_u32 s52, s50, {WS_OVC}")
    a("v_lshlrev_b32 v6, 8, v0")
    a("v_add_u32 v6, s51, v6")
    a("v_mov_b32 v7, 0x7ffffff0")
    a("v_cmp_gt_u32 vcc, 250, v0")
    a("v_cndmask_b32 v6, v7, v6, vcc")
    a("v_mov_b32 v7, s52")
    a("v_cmp_eq_u32 vcc, 256, v0")
    a("v_cndmask_b32 v6, v6, v7, vcc")
    a("buffer_store_dword v52, v6, s[40:43], 0 offen")
    rt_end()
    a("s_endpgm")
    a.label("K1_NOTPROD")
    a(f"s_cmp_ge_u32 s2, {K1_NPROD+K1_NGEMM}")
    a("s_cbranch_scc1 K1_IMG")
    a(f"s_sub_u32 s26, s2, {K1_NPROD}")
    a("s_lshr_b32 s27, s26, 1")
    a("s_and_b32 s26, s26, 1")
    a("v_lshrrev_b32 v1, 6, v0")
    a("v_and_b32 v2, 63, v0")
    a("v_readfirstlane_b32 s44, v1")
    a("v_and_b32 v3, 31, v2")
    a("v_lshrrev_b32 v4, 5, v2")
    a("v_xor_b32 v5, v3, v4")
    a("v_lshlrev_b32 v5, 4, v5")
    a("v_lshl_or_b32 v5, v4, 9, v5")
    a("s_lshl_b32 s45, s27, 16")
    a("s_lshl_b32 s46, s44, 13")
    a("s_add_u32 s45, s45, s46")
    a("s_and_b32 s48, s44, 3")
    a("s_lshr_b32 s49, s44, 2")
    a("s_lshl_b32 s50, s26, 1")
    a("s_add_u32 s50, s50, s49")
    a("v_and_b32 v6, 7, v2")
    a("v_lshrrev_b32 v7, 3, v2")
    a("v_lshlrev_b32 v8, 12, v7")
    a("v_lshl_add_u32 v8, v6, 4, v8")
    a("s_lshl_b32 s51, s50, 7")
    a("s_lshl_b32 s52, s48, 15")
    a("s_add_u32 s52, s52, s51")
    a("s_waitcnt lgkmcnt(0)")
    srd(a,32,14,529*512)
    X=lambda j: 16+4*j
    a(f"s_add_u32 s53, s52, {256*512}")
    for j in range(8): a(f"buffer_load_dwordx4 v[{X(j)}:{X(j)+3}], v8, s[32:35], s53 offen offset:{j*512}")
    srd(a,28,4,N*512)
    for j in range(8):
        a(f"v_xor_b32 v9, {j<<5}, v5")
        a(f"s_add_u32 s47, s45, {j*1024}")
        a(f"s_add_u32 m0, s46, {j*1024}")
        a(f"buffer_load_dwordx4 v9, s[28:31], s47 offen lds")
    srd(a,36,24,WS_B_SIZE)
    a("s_mov_b32 s54, 0x05040100")
    a("s_mov_b32 s55, 0x07060302")
    a("v_lshrrev_b32 v10, 1, v7")
    a("v_lshlrev_b32 v10, 11, v10")
    a("v_and_b32 v11, 1, v7")
    a("v_lshl_add_u32 v10, v11, 9, v10")
    a("v_lshl_add_u32 v10, v6, 6, v10")
    a("s_lshl_b32 s56, s49, 15")
    a("s_lshl_b32 s57, s48, 13")
    a("s_add_u32 s56, s56, s57")
    a("s_add_u32 s56, s56, 65536")
    a("v_add_u32 v9, s56, v10")
    a("s_waitcnt vmcnt(8)")
    for m in range(4):
        for q in range(4):
            a(f"v_perm_b32 v{48+q}, v{X(2*q+1)+m}, v{X(2*q)+m}, s54")
            a(f"v_perm_b32 v{52+q}, v{X(2*q+1)+m}, v{X(2*q)+m}, s55")
        a(f"ds_write_b128 v9, v[48:51] offset:{m*16}")
        a(f"ds_write_b128 v9, v[52:55] offset:{m*16+1024}")
    a("v_and_b32 v10, 15, v3")
    a("v_xor_b32 v10, v10, v4")
    a("v_lshlrev_b32 v10, 4, v10")
    a("v_lshl_add_u32 v10, v3, 9, v10")
    a("s_lshl_b32 s57, s48, 14")
    a("v_add_u32 v10, s57, v10")
    a("v_lshlrev_b32 v8, 4, v2")
    a("s_lshl_b32 s56, s49, 15")
    a("s_add_u32 s56, s56, 65536")
    a("v_add_u32 v11, s56, v8")
    a("s_waitcnt vmcnt(0) lgkmcnt(0)")
    a("s_barrier")
    ACL=64; ACH=80
    FR=lambda g: 16+12*(g%4)
    def rd(ks):
        f=FR(ks)
        a(f"v_xor_b32 v12, {ks<<5}, v10")
        a(f"ds_read_b128 v[{f}:{f+3}], v12")
        a(f"ds_read_b128 v[{f+4}:{f+7}], v11 offset:{ks*2048}")
        a(f"ds_read_b128 v[{f+8}:{f+11}], v11 offset:{ks*2048+1024}")
    for ks in range(3): rd(ks)
    for ks in range(16):
        if ks+3<16:
            rd(ks+3); a("s_waitcnt lgkmcnt(9)")
        else:
            a(f"s_waitcnt lgkmcnt({3*(15-ks)})")
        f=FR(ks)
        cl = '0' if ks==0 else f"v[{ACL}:{ACL+15}]"
        ch = '0' if ks==0 else f"v[{ACH}:{ACH+15}]"
        a(f"v_mfma_f32_32x32x16_bf16 v[{ACL}:{ACL+15}], v[{f}:{f+3}], v[{f+4}:{f+7}], {cl}")
        a(f"v_mfma_f32_32x32x16_bf16 v[{ACH}:{ACH+15}], v[{f}:{f+3}], v[{f+8}:{f+11}], {ch}")
    a(f"s_mov_b32 s58, {f2u(-LOG2E)}")
    a("s_mov_b32 s59, 0x7f7fffff")
    a("s_mov_b32 s60, 0xffff0000")
    a("s_mov_b32 s61, 0x80000000")
    a("v_lshlrev_b32 v13, 11, v4")
    a("v_lshl_add_u32 v13, v3, 2, v13")
    a("s_lshl_b32 s62, s27, 16")
    a("s_lshl_b32 s63, s48, 14")
    a("s_add_u32 s62, s62, s63")
    a("s_lshl_b32 s63, s50, 7")
    a("s_add_u32 s62, s62, s63")
    for r in range(16):
        lo=ACL+r; hi=ACH+r
        a(f"v_mul_f32 v16, s58, v{lo}")
        a(f"v_mul_f32 v17, s58, v{hi}")
        a(f"v_cvt_pk_bf16_f32 v18, v16, v16")
        a(f"v_and_b32 v19, 0x7fffffff, v17")
        a(f"v_and_b32 v18, 0xffff, v18")
        a(f"v_add_u32 v19, 0x8000, v19")
        a(f"v_sub_u32 v19, v19, v18")
        a(f"v_med3_i32 v19, v19, 0, s59")
        a(f"v_and_or_b32 v19, v19, s60, v18")
        t=20+(r%4)
        a(f"v_and_or_b32 v{t}, v17, s61, v19")
        if r%4==0:
            a(f"s_add_u32 s63, s62, {(r>>2)*4096}")
        a(f"buffer_store_dword v{t}, v13, s[36:39], s63 offen offset:{(r&3)*512}"+SF)
    rt_end()
    a("s_endpgm")
    a.label("K1_IMG")
    a(f"s_sub_u32 s26, s2, {K1_NPROD+K1_NGEMM}")
    a("s_lshr_b32 s27, s26, 3")
    a("s_and_b32 s28, s26, 7")
    a("s_waitcnt lgkmcnt(0)")
    srd(a,40,24,WS_END)
    a("v_and_b32 v1, 63, v0")
    a("v_bfe_u32 v2, v0, 6, 3")
    a("v_and_b32 v3, 15, v1")
    a("v_lshrrev_b32 v4, 4, v1")
    a("s_cmp_eq_u32 s27, 3")
    a("s_cbranch_scc1 K1I_W3")
    a("s_cmp_eq_u32 s27, 0")
    a("s_cbranch_scc1 K1I_W1")
    srd(a,32,18,512*512)
    a("s_cmp_eq_u32 s27, 1")
    a("s_cbranch_scc1 K1I_WH1")
    a("v_lshrrev_b32 v5, 1, v2")
    a("v_lshlrev_b32 v5, 6, v5")
    a("v_lshl_add_u32 v5, v4, 4, v5")
    a("v_and_b32 v6, 1, v2")
    a("v_add3_u32 v5, v5, v6, 0")
    a("v_add_u32 v5, 256, v5")
    a("s_movk_i32 s44, 1024")
    a(f"s_mov_b32 s45, {f2u(-LN2)}")
    a(f"s_mov_b32 s46, {IMG_WH2}")
    a("s_branch K1I_COLNAT")
    a.label("K1I_WH1")
    a("v_lshlrev_b32 v5, 5, v2")
    a("v_lshl_add_u32 v5, v4, 3, v5")
    a("s_movk_i32 s44, 512")
    a("s_mov_b32 s45, 1.0")
    a(f"s_mov_b32 s46, {IMG_WH1}")
    a.label("K1I_COLNAT")
    a("s_lshl_b32 s47, s28, 5")
    a("v_add_u32 v6, s47, v3")
    a("v_lshlrev_b32 v6, 1, v6")
    a("v_lshl_add_u32 v7, v5, 9, v6")
    a("v_add_u32 v8, 32, v7")
    a("s_branch K1I_GO")
    a.label("K1I_W1")
    srd(a,32,14,529*512)
    a("v_lshlrev_b32 v5, 5, v2")
    a("v_lshl_add_u32 v5, v4, 3, v5")
    a("s_movk_i32 s44, 512")
    a("s_mov_b32 s45, 1.0")
    a(f"s_mov_b32 s46, {IMG_W1}")
    a("s_lshr_b32 s47, s28, 1")
    a("s_lshl_b32 s47, s47, 6")
    a("s_and_b32 s48, s28, 1")
    a("s_add_u32 s47, s47, s48")
    a("v_lshl_add_u32 v6, v3, 1, s47")
    a("v_lshlrev_b32 v6, 1, v6")
    a("v_lshl_add_u32 v7, v5, 9, v6")
    a("v_add_u32 v8, 64, v7")
    a("s_branch K1I_GO")
    a.label("K1I_W3")
    srd(a,32,14,529*512)
    a("v_and_b32 v3, 31, v1")
    a("v_lshrrev_b32 v4, 5, v1")
    a("v_lshlrev_b32 v5, 3, v4")
    a("v_add_u32 v5, 513, v5")
    a("v_lshrrev_b32 v6, 7, v0")
    a("v_lshlrev_b32 v6, 6, v6")
    a("v_lshl_add_u32 v6, v3, 1, v6")
    a("v_bfe_u32 v9, v0, 6, 1")
    a("v_add_u32 v6, v6, v9")
    a("v_lshlrev_b32 v6, 1, v6")
    a("v_lshl_add_u32 v7, v5, 9, v6")
    a("v_mov_b32 v8, 0x7ffffff0")
    a("s_movk_i32 s44, 512")
    a(f"s_mov_b32 s45, {f2u(-LOG2E)}")
    a(f"s_mov_b32 s46, {IMG_W3}")
    a("s_mov_b32 s28, 0")
    a.label("K1I_GO")
    a("s_mov_b32 s47, 0")
    for j in range(8):
        a(f"buffer_load_ushort v{16+j}, v7, s[32:35], s47 offen")
        a(f"buffer_load_ushort v{24+j}, v8, s[32:35], s47 offen")
        a("s_add_u32 s47, s47, s44")
    a("s_lshl_b32 s48, s28, 14")
    a("s_add_u32 s48, s48, s46")
    a("v_lshlrev_b32 v10, 4, v0")
    a("v_add_u32 v10, s48, v10")
    a("v_add_u32 v11, 8192, v10")
    a("s_cmp_eq_u32 s27, 3")
    a("s_cselect_b32 s49, 0x7ffffff0, 0")
    a("v_or_b32 v11, s49, v11")
    a("s_waitcnt vmcnt(0)")
    for u in range(2):
        for j in range(8):
            r=16+8*u+j
            a(f"v_lshlrev_b32 v{r}, 16, v{r}")
            a(f"v_mul_f32 v{r}, s45, v{r}")
        for q in range(4):
            a(f"v_cvt_pk_bf16_f32 v{32+4*u+q}, v{16+8*u+2*q}, v{16+8*u+2*q+1}")
        a(f"buffer_store_dwordx4 v[{32+4*u}:{35+4*u}], v{10+u}, s[40:43], 0 offen")
    rt_end()
    a.label("K1_END")
    a("s_endpgm")
    return a
```

```python
from asmgen import Asm
from k1 import *
TCAP=24
MI_STR=544
L_LUT=0
L_S2=512
L_MI=L_S2+(TCAP+4)*2048
L_POS=L_MI+64*MI_STR
L_CNT=L_POS+4096
L_OVM=L_CNT+248
ZERO_BEG=L_S2; ZERO_END=L_CNT+256
L_AT=(ZERO_END+511)//512*512
L_HT=L_AT+20480
L_OFF=L_HT+20480
L_EI=L_OFF+TCAP*128
L_WXF=L_EI+TCAP*256
L_SB=L_WXF+512
K2_LDS=L_SB+64
NZ=(ZERO_END-ZERO_BEG+16383)//16384
assert ZERO_BEG+NZ*16384 <= L_HT
assert L_HT+48*512 <= K2_LDS and K2_LDS<=163840 and L_HT%512==0
PADOFF=0x500000
V_S2A=0; V_HH16=1; V_LOFF=2; V_WD=3; V_EIA=4; V_INF=5; V_TA=6; V_TB=7
W3L=8; W3H=12; ATL=16; ATH=20; X1=24; X2=28; S2A=32; T=36; G=44; L=60; H=76; D2L=92; D2H=108
V_PP=124; V_PP2=125; V_LANE=126; V_TMP=127; V_TMP2=123; V_TID=122
def vr(b,n=4): return f"v[{b}:{b+n-1}]"
S_WAVE=52; S_W=53; S_SUB=54; S_G1=56; S_N=60; S_T=61; S_TL=62; S_TE=63; S_CUR=64; S_ATG=65; S_RB=66
S_V0=76; S_V1=78; S_V2=16; S_V3=18; S_FIRST=80; S_PRE=81; S_OVM=82; S_OCH=84; S_OCN=85; S_OP=86; S_RB0=87; S_RB1=88; S_CONT=89
S_GB=92; S_STR=93; S_NXT=94; S_PER=95; S_PG=96

def gen_k2(dbg=False, abl=()):
    a=Asm()
    def stamp(i):
        if not dbg: return
        a(f"s_memtime s[90:91]")
        a("s_waitcnt lgkmcnt(0)")
        a(f"v_writelane_b32 v{V_TMP}, s90, {i}")
    def rstamp(i):
        if not dbg: return
        a(f"s_memrealtime s[90:91]")
        a("s_waitcnt lgkmcnt(0)")
        a(f"v_writelane_b32 v{V_TMP}, s90, {i}")
    def stamp_out():
        if not dbg: return
        a(f"s_cmp_eq_u32 s2, {dbg-1}")
        a(f"s_cbranch_scc0 K2_STX")
        a(f"v_mbcnt_lo_u32_b32 v{V_LANE}, -1, 0")
        a(f"v_mbcnt_hi_u32_b32 v{V_LANE}, -1, v{V_LANE}")
        a(f"s_lshl_b32 s90, s{S_WAVE}, 6")
        a(f"v_lshl_add_u32 v{V_LANE}, v{V_LANE}, 2, s90")
        a(f"s_mov_b64 exec, 0xffff")
        a(f"global_store_dword v{V_LANE}, v{V_TMP}, s[22:23]")
        a(f"s_mov_b64 exec, -1")
        a.label("K2_STX")
        a(f"s_cmp_eq_u32 s{S_WAVE}, 15")
        a("s_cbranch_scc0 K2_RT")
        a("s_memrealtime s[90:91]")
        a("s_waitcnt lgkmcnt(0)")
        a("v_mov_b32 v8, s26")
        a("v_mov_b32 v9, s90")
        a("s_lshl_b32 s90, s2, 3")
        a("s_add_u32 s90, s90, 0x2000000")
        a("v_mov_b32 v10, s90")
        a("global_store_dwordx2 v10, v[8:9], s[24:25]")
        a.label("K2_RT")
    def lane_tid():
        a(f"v_mbcnt_lo_u32_b32 v{V_LANE}, -1, 0")
        a(f"v_mbcnt_hi_u32_b32 v{V_LANE}, -1, v{V_LANE}")
        a(f"s_lshl_b32 s55, s{S_WAVE}, 6")
        a(f"v_add_u32 v{V_TID}, s55, v{V_LANE}")
    def pad_tables(tid16, t0):
        a(f"v_mov_b32 v{t0}, {PADOFF}")
        a(f"v_mov_b32 v{t0+1}, {15<<5}")
        a(f"v_mov_b32 v{t0+2}, {PADOFF}")
        a(f"v_mov_b32 v{t0+3}, {15<<5}")
        a(f"v_add_u32 v{t0+4}, {L_EI}, v{tid16}")
        a(f"v_cmp_gt_u32 vcc, {TCAP*16}, v{V_TID}")
        a("s_and_saveexec_b64 s[70:71], vcc")
        a(f"ds_write_b128 v{t0+4}, {vr(t0)}")
        a("s_mov_b64 exec, s[70:71]")
        a(f"v_mov_b32 v{t0+1}, {PADOFF}")
        a(f"v_mov_b32 v{t0+3}, {PADOFF}")
        a(f"v_add_u32 v{t0+4}, {L_OFF}, v{tid16}")
        a(f"v_cmp_gt_u32 vcc, {TCAP*8}, v{V_TID}")
        a("s_and_saveexec_b64 s[70:71], vcc")
        a(f"ds_write_b128 v{t0+4}, {vr(t0)}")
        a("s_mov_b64 exec, s[70:71]")
    def zero_region(tid16, t0, beg, n16k, end=None):
        for i in range(4): a(f"v_mov_b32 v{t0+i}, 0")
        a(f"v_add_u32 v{t0+4}, {beg}, v{tid16}")
        for k in range(n16k):
            if k==3: a(f"v_add_u32 v{t0+4}, {3*16384}, v{t0+4}")
            lim = end is not None and k==n16k-1 and beg+n16k*16384>end
            if lim:
                a(f"v_cmp_gt_u32 vcc, {(end-beg-(n16k-1)*16384)//16}, v{V_TID}")
                a("s_and_saveexec_b64 s[70:71], vcc")
            a(f"ds_write_b128 v{t0+4}, {vr(t0)} offset:{(k%3)*16384}")
            if lim: a("s_mov_b64 exec, s[70:71]")

    sbn=[0]
    def sb_arrive(idx, tmp):
        a(f"v_mov_b32 v{tmp}, {L_SB+4*idx}")
        a(f"v_mov_b32 v{tmp+1}, 1")
        a("s_mov_b64 exec, 1")
        a(f"ds_add_u32 v{tmp}, v{tmp+1}")
        a("s_mov_b64 exec, -1")
    def sb_wait(idx, tmp, target=8):
        sbn[0]+=1; l=f"K2_SBW{sbn[0]}"
        a(f"v_mov_b32 v{tmp}, {L_SB+4*idx}")
        a.label(l)
        a(f"ds_read_b32 v{tmp+1}, v{tmp}")
        a("s_waitcnt lgkmcnt(0)")
        a(f"v_readfirstlane_b32 s69, v{tmp+1}")
        a(f"s_cmp_ge_u32 s69, {target}")
        a(f"s_cbranch_scc1 {l}X")
        a("s_sleep 1")
        a(f"s_branch {l}")
        a.label(l+"X")
    RECS=((100,S_V0),(104,S_V1),(108,S_V2),(112,S_V3))
    DL=lambda k: 60+k; CA=lambda k: 64+k; RK=lambda k: 68+k; RL=lambda k: 72+k
    def load_recs(all4):
        a(f"v_lshlrev_b32 v121, 4, v{V_TID}")
        a(f"v_add_u32 v120, 8192, v121")
        a(f"buffer_load_dwordx4 v[100:103], v121, s[40:43], s{S_RB0} offen")
        a(f"buffer_load_dwordx4 v[104:107], v120, s[40:43], s{S_RB0} offen")
        if all4:
            a(f"buffer_load_dwordx4 v[108:111], v121, s[40:43], s{S_RB1} offen")
            a(f"buffer_load_dwordx4 v[112:115], v120, s[40:43], s{S_RB1} offen")
    def zero512(beg, end, t0):
        n=(end-beg+8191)//8192
        for i in range(4): a(f"v_mov_b32 v{t0+i}, 0")
        a(f"v_add_u32 v{t0+4}, {beg}, v121")
        for k in range(n):
            if k and k%7==0: a(f"v_add_u32 v{t0+4}, {7*8192}, v{t0+4}")
            lim = (k==n-1 and beg+n*8192>end)
            if lim:
                a(f"v_cmp_gt_u32 vcc, {(end-beg-(n-1)*8192)//16}, v{V_TID}")
                a("s_and_saveexec_b64 s[70:71], vcc")
            a(f"ds_write_b128 v{t0+4}, {vr(t0)} offset:{(k%7)*8192}")
            if lim: a("s_mov_b64 exec, s[70:71]")
    def pad512(t0):
        a(f"v_mov_b32 v{t0}, {PADOFF}")
        a(f"v_mov_b32 v{t0+1}, {15<<5}")
        a(f"v_mov_b32 v{t0+2}, {PADOFF}")
        a(f"v_mov_b32 v{t0+3}, {15<<5}")
        a(f"v_add_u32 v{t0+4}, {L_EI}, v121")
        a(f"v_cmp_gt_u32 vcc, {TCAP*16}, v{V_TID}")
        a("s_and_saveexec_b64 s[70:71], vcc")
        a(f"ds_write_b128 v{t0+4}, {vr(t0)}")
        a("s_mov_b64 exec, s[70:71]")
        a(f"v_mov_b32 v{t0+1}, {PADOFF}")
        a(f"v_mov_b32 v{t0+3}, {PADOFF}")
        a(f"v_add_u32 v{t0+4}, {L_OFF}, v121")
        a(f"v_cmp_gt_u32 vcc, {TCAP*8}, v{V_TID}")
        a("s_and_saveexec_b64 s[70:71], vcc")
        a(f"ds_write_b128 v{t0+4}, {vr(t0)}")
        a("s_mov_b64 exec, s[70:71]")
    assert TCAP*16<=512
    def small_loads():
        a(f"s_lshl_b32 s55, s{S_W}, 11")
        a(f"s_add_u32 s55, s55, {IMG_W3}")
        a(f"buffer_load_dwordx4 {vr(W3L)}, v{V_TMP2}, s[40:43], s55 offen")
        a(f"buffer_load_dwordx4 {vr(W3H)}, v{V_TMP2}, s[40:43], s55 offen offset:1024")
        a(f"s_mov_b32 s13, {512*512}")
        a(f"buffer_load_dword v{V_WD}, v{V_LOFF}, s[48:51], s13 offen")
    a(f"s_cmp_ge_u32 s2, {NB}")
    a("s_cbranch_scc1 K2_END")
    if dbg: a("s_memrealtime s[26:27]")
    a("s_load_dwordx2 s[24:25], s[0:1], 80")
    a("s_load_dwordx16 s[4:19], s[0:1], 0")
    a("s_load_dwordx4 s[20:23], s[0:1], 64")
    a(f"v_mov_b32 v{V_TID}, v0")
    a(f"v_and_b32 v{V_LANE}, 63, v0")
    a("v_lshrrev_b32 v120, 6, v0")
    a(f"v_readfirstlane_b32 s{S_WAVE}, v120")
    a(f"s_lshl_b32 s{S_RB0}, s2, 15")
    a(f"s_add_u32 s{S_RB0}, s{S_RB0}, {WS_CELL}")
    a(f"s_add_u32 s{S_RB1}, s{S_RB0}, 16384")
    a(f"s_and_b32 s{S_W}, s{S_WAVE}, 3")
    a(f"s_lshr_b32 s{S_SUB}, s{S_WAVE}, 2")
    a(f"v_and_b32 v{V_TA}, 31, v{V_LANE}")
    a(f"v_lshrrev_b32 v{V_TB}, 5, v{V_LANE}")
    a(f"v_lshlrev_b32 v{V_TMP2}, 4, v{V_LANE}")
    a(f"v_lshlrev_b32 v{V_HH16}, 4, v{V_TB}")
    a(f"s_lshl_b32 s55, s{S_W}, 7")
    a(f"v_lshl_add_u32 v{V_LOFF}, v{V_TA}, 2, s55")
    a(f"v_lshlrev_b32 v{V_S2A}, 10, v{V_TB}")
    a(f"v_lshl_add_u32 v{V_S2A}, v{V_TA}, 4, v{V_S2A}")
    a(f"v_add_u32 v{V_S2A}, {L_S2}, v{V_S2A}")
    a(f"v_bfe_u32 v121, v{V_TA}, 2, 1")
    a(f"v_lshlrev_b32 v{V_EIA}, 4, v121")
    a(f"v_and_b32 v121, 3, v{V_TA}")
    a(f"v_add_u32 v{V_EIA}, v{V_EIA}, v121")
    a(f"v_lshrrev_b32 v121, 3, v{V_TA}")
    a(f"v_lshl_add_u32 v{V_EIA}, v121, 2, v{V_EIA}")
    a(f"v_lshlrev_b32 v{V_EIA}, 3, v{V_EIA}")
    a(f"v_add_u32 v{V_EIA}, {L_EI}, v{V_EIA}")
    a("s_lshl_b32 s55, s2, 8")
    a(f"s_add_u32 s55, s55, {WS_HDR}")
    a(f"v_lshrrev_b32 v120, 4, v{V_TID}")
    a("v_lshlrev_b32 v120, 2, v120")
    a(f"v_lshlrev_b32 v8, 2, v{V_LANE}")
    a(f"v_add_u32 v8, {L_SB}, v8")
    a("v_mov_b32 v9, 0")
    a("s_mov_b64 exec, 0xffff")
    a("ds_write_b32 v8, v9")
    a("s_mov_b64 exec, -1")
    a("s_waitcnt lgkmcnt(0)")
    a("s_barrier")
    stamp(0)
    rstamp(14)
    srd(a,40,24,WS_END)
    srd(a,32,8,E*32)
    srd(a,36,24,WS_B_SIZE)
    srd(a,44,20,2590000*2)
    a(f"s_mov_b32 s{S_FIRST}, 1")
    a(f"s_mov_b64 s[{S_OVM}:{S_OVM+1}], 0")
    a(f"s_mov_b32 s{S_OCH}, 0")
    a(f"s_mov_b32 s{S_OCN}, 0")
    a(f"s_mov_b32 s{S_OP}, 0")
    a(f"s_mov_b32 s{S_PRE}, 0")
    a(f"s_cmp_ge_u32 s{S_WAVE}, 8")
    a("s_cbranch_scc1 K2_GW")
    a("buffer_load_dword v116, v120, s[40:43], s55 offen")
    a("buffer_load_dword v117, v120, s[40:43], s55 offen offset:128")
    load_recs(False)
    srd(a,48,14,529*512)
    zero512(ZERO_BEG, ZERO_END, 24)
    a("s_waitcnt vmcnt(2)")
    a(f"v_and_b32 v119, 15, v{V_TID}")
    a(f"v_cmp_lt_u32 s[{S_V0}:{S_V0+1}], v119, v116")
    a(f"v_cmp_lt_u32 s[{S_V1}:{S_V1+1}], v119, v117")
    a("v_add_u32 v119, 16, v119")
    a(f"v_cmp_lt_u32 s[{S_V2}:{S_V2+1}], v119, v116")
    a(f"v_cmp_lt_u32 s[{S_V3}:{S_V3+1}], v119, v117")
    a(f"s_mov_b64 exec, s[{S_V2}:{S_V2+1}]")
    a("s_cbranch_execz K2_NOA1")
    a(f"buffer_load_dwordx4 v[108:111], v121, s[40:43], s{S_RB1} offen")
    a.label("K2_NOA1")
    a(f"s_mov_b64 exec, s[{S_V3}:{S_V3+1}]")
    a("s_cbranch_execz K2_NOB1")
    a(f"buffer_load_dwordx4 v[112:115], v120, s[40:43], s{S_RB1} offen")
    a.label("K2_NOB1")
    a("s_mov_b64 exec, -1")
    pad512(24)
    a(f"v_lshrrev_b32 v92, 1, v{V_TID}")
    a(f"v_and_b32 v93, 1, v{V_TID}")
    a("v_lshlrev_b32 v93, 3, v93")
    a("v_sub_u32 v92, v92, v93")
    a("v_lshrrev_b32 v93, 1, v92")
    a("v_and_b32 v94, 1, v92")
    a("v_lshlrev_b32 v94, 4, v94")
    a("v_mov_b32 v95, 0x3f80")
    a("v_lshlrev_b32 v95, v94, v95")
    for q in range(4):
        a(f"v_cmp_eq_u32 vcc, {q}, v93")
        a(f"v_cndmask_b32 v{24+q}, 0, v95, vcc")
    a(f"v_cmp_eq_u32 vcc, 31, v{V_TID}")
    a("v_cndmask_b32 v27, v27, 0, vcc")
    a(f"v_cmp_gt_u32 vcc, 32, v{V_TID}")
    a("s_and_saveexec_b64 s[70:71], vcc")
    a("ds_write_b128 v121, v[24:27]")
    a("s_mov_b64 exec, s[70:71]")
    stamp(11)
    a("s_waitcnt lgkmcnt(0)")
    sb_arrive(0, 36)
    sb_wait(0, 36)
    a("s_waitcnt vmcnt(0)")
    a("s_branch K2_B1")
    a.label("K2_GW")
    srd(a,28,4,N*512)
    srd(a,48,14,529*512)
    a(f"s_sub_u32 s67, s{S_WAVE}, 8")
    a("s_mul_i32 s55, s67, 5")
    a("s_mul_i32 s14, s2, 40")
    for j in range(3):
        a(f"s_add_u32 s68, s55, {2*j}")
        a(f"v_add_u32 v8, s68, v{V_TB}")
        a("v_and_b32 v9, 15, v8")
        a(f"v_xor_b32 v9, v9, v{V_TA}")
        a("v_lshlrev_b32 v9, 4, v9")
        a(f"v_lshl_or_b32 v9, v{V_TB}, 9, v9")
        a("s_add_u32 s56, s14, s68")
        a("s_lshl_b32 s56, s56, 9")
        a("s_lshl_b32 s57, s68, 9")
        a(f"s_add_u32 m0, s57, {L_HT}")
        if j==2: a("s_mov_b64 exec, 0xffffffff")
        a("buffer_load_dwordx4 v9, s[28:31], s56 offen lds")
        if j==2: a("s_mov_b64 exec, -1")
    WF=56
    a(f"s_lshl_b32 s13, s67, 14")
    a(f"s_add_u32 s13, s13, {IMG_W1}")
    for c in range(2):
        for ks in range(8):
            if ks==4 or (c==1 and ks==0): a("s_add_u32 s13, s13, 4096")
            a(f"buffer_load_dwordx4 {vr(WF+32*c+4*ks)}, v{V_TMP2}, s[40:43], s13 offen offset:{(ks%4)*1024}")
    srd(a,72,16,512)
    a(f"v_subrev_u32 v120, 512, v{V_TID}")
    a("v_and_b32 v8, 0xc0, v120")
    a(f"v_lshl_add_u32 v8, v{V_TA}, 1, v8")
    a("v_bfe_u32 v9, v120, 5, 1")
    a("v_add_u32 v8, v8, v9")
    a("v_lshlrev_b32 v8, 1, v8")
    a("v_mov_b32 v10, 0x7ffffff0")
    a("v_cmp_gt_u32 vcc, 256, v120")
    a("v_cndmask_b32 v8, v10, v8, vcc")
    a(f"buffer_load_ushort v{V_PP}, v8, s[72:75], 0 offen")
    a("v_lshrrev_b32 v11, 6, v120")
    a("v_lshlrev_b32 v11, 7, v11")
    a("v_lshl_add_u32 v11, v9, 6, v11")
    a(f"v_lshrrev_b32 v10, 4, v{V_TA}")
    a("v_lshl_add_u32 v11, v10, 5, v11")
    a(f"v_bfe_u32 v10, v{V_TA}, 2, 1")
    a("v_lshl_add_u32 v11, v10, 4, v11")
    a(f"v_and_b32 v10, 3, v{V_TA}")
    a("v_lshl_add_u32 v11, v10, 1, v11")
    a(f"v_bfe_u32 v10, v{V_TA}, 3, 1")
    a("v_lshl_add_u32 v11, v10, 3, v11")
    a(f"v_add_u32 v{V_PP2}, {L_WXF}, v11")
    stamp(11)
    a("s_waitcnt vmcnt(17)")
    sb_arrive(1, 8)
    sb_wait(1, 8)
    stamp(1)
    a(f"v_and_b32 v{V_TA}, 15, v{V_LANE}")
    a(f"v_lshrrev_b32 v{V_TB}, 4, v{V_LANE}")
    a(f"v_xor_b32 v120, v{V_TA}, v{V_TB}")
    a("v_lshlrev_b32 v120, 4, v120")
    a(f"v_lshl_add_u32 v120, v{V_TA}, 9, v120")
    a(f"v_add_u32 v120, {L_HT}, v120")
    AC=8; AF=32
    def rdh(ks):
        a(f"v_xor_b32 v121, {ks<<6}, v120")
        for rt in range(3): a(f"ds_read_b128 {vr(AF+12*(ks%2)+4*rt)}, v121 offset:{rt*8192}")
    rdh(0)
    a("s_waitcnt vmcnt(1)")
    for ks in range(8):
        if ks<7:
            rdh(ks+1); a("s_waitcnt lgkmcnt(3)")
        else: a("s_waitcnt lgkmcnt(0)")
        for c in range(2):
            for rt in range(3):
                acc=AC+12*c+4*rt
                cc='0' if ks==0 else vr(acc)
                a(f"v_mfma_f32_16x16x32_bf16 {vr(acc)}, {vr(AF+12*(ks%2)+4*rt)}, {vr(WF+32*c+4*ks)}, {cc}")
    a(f"s_sub_u32 s67, s{S_WAVE}, 8")
    a("s_lshl_b32 s55, s67, 5")
    a(f"v_add_u32 v121, s55, v{V_TA}")
    a("v_mul_u32_u24 v121, 80, v121")
    a(f"v_lshl_add_u32 v121, v{V_TB}, 3, v121")
    a(f"v_add_u32 v121, {L_AT}, v121")
    a(f"s_mov_b32 s55, {f2u(-LOG2E)}")
    for c in range(2):
        for rt in range(3):
            acc=AC+12*c+4*rt
            for r in range(4): a(f"v_mul_f32 v{acc+r}, s55, v{acc+r}")
            o=32+2*(3*c+rt)
            a(f"v_cvt_pk_bf16_f32 v{o}, v{acc}, v{acc+1}")
            a(f"v_cvt_pk_bf16_f32 v{o+1}, v{acc+2}, v{acc+3}")
            if rt==2: a("s_mov_b64 exec, 0xffffffff")
            a(f"ds_write_b64 v121, v[{o}:{o+1}] offset:{rt*32+c*16*80}")
            if rt==2: a("s_mov_b64 exec, -1")
    a("s_waitcnt vmcnt(0)")
    a(f"v_subrev_u32 v120, 512, v{V_TID}")
    a("v_cmp_gt_u32 vcc, 256, v120")
    a("s_and_saveexec_b64 s[70:71], vcc")
    a(f"ds_write_b16 v{V_PP2}, v{V_PP}")
    a("s_mov_b64 exec, s[70:71]")
    small_loads()
    stamp(2)
    sb_wait(2, 36)
    stamp(3)
    a("s_branch K2_SCAN")
    a.label("K2_B1")
    stamp(1)
    a("v_max_u32 v118, v116, v117")
    a("v_cmp_lt_u32 vcc, 32, v118")
    a("s_and_saveexec_b64 s[70:71], vcc")
    a("s_cbranch_execz K2_NOOV2")
    for hv,add in ((116,0),(117,32)):
        a(f"v_lshrrev_b32 v119, 4, v{V_TID}")
        if add: a(f"v_add_u32 v119, {add}, v119")
        a(f"v_cmp_lt_u32 vcc, 32, v{hv}")
        a("v_cndmask_b32 v120, 0, 1, vcc")
        a("v_mov_b32 v121, 0")
        a("v_lshlrev_b64 v[120:121], v119, v[120:121]")
        a(f"v_mov_b32 v119, {L_OVM}")
        a("ds_or_b64 v119, v[120:121]")
    a.label("K2_NOOV2")
    a("s_mov_b64 exec, s[70:71]")
    stamp(2)
    a.label("K2_BATCH")
    a(f"s_cmp_ge_u32 s{S_WAVE}, 8")
    a("s_cbranch_scc1 K2_RANKED")
    a("v_mov_b32 v119, 1")
    for k,(rec,val) in enumerate(RECS):
        a(f"v_bfe_u32 v{DL(k)}, v{rec}, 24, 6")
        a(f"v_lshlrev_b32 v{CA(k)}, 2, v{DL(k)}")
        a(f"v_add_u32 v118, {L_CNT}, v{CA(k)}")
        a(f"s_mov_b64 exec, s[{val}:{val+1}]")
        a(f"ds_add_rtn_u32 v{RK(k)}, v118, v119")
        a("s_mov_b64 exec, -1")
    a(f"s_cmp_eq_u32 s{S_FIRST}, 0")
    a("s_cbranch_scc1 K2_RANKED")
    small_loads()
    a("s_waitcnt lgkmcnt(0)")
    sb_arrive(2, 36)
    sb_wait(2, 36)
    stamp(3)
    a("s_branch K2_SCAN")
    a.label("K2_RANKED")
    a("s_waitcnt lgkmcnt(0)")
    a("s_barrier")
    a.label("K2_SCAN")
    a(f"v_lshlrev_b32 v36, 2, v{V_LANE}")
    a(f"v_add_u32 v36, {L_CNT}, v36")
    a("ds_read_b32 v37, v36")
    a(f"v_mov_b32 v38, {L_OVM}")
    a("ds_read_b64 v[38:39], v38")
    a(f"v_cmp_gt_u32 vcc, 40, v{V_LANE}")
    a("s_waitcnt lgkmcnt(0)")
    a("v_cndmask_b32 v37, 0, v37, vcc")
    a("v_mov_b32 v40, v37")
    for sh in (1,2,4,8):
        a(f"v_add_u32_dpp v40, v40, v40 row_shr:{sh} row_mask:0xf bank_mask:0xf bound_ctrl:0")
    a("v_add_u32_dpp v40, v40, v40 row_bcast:15 row_mask:0xa bank_mask:0xf")
    a("v_add_u32_dpp v40, v40, v40 row_bcast:31 row_mask:0xc bank_mask:0xf")
    a("v_sub_u32 v41, v40, v37")
    a(f"s_cmp_eq_u32 s{S_FIRST}, 0")
    a("s_cbranch_scc1 K2_NOMASK")
    a(f"v_readfirstlane_b32 s{S_OVM}, v38")
    a(f"v_readfirstlane_b32 s{S_OVM+1}, v39")
    a.label("K2_NOMASK")
    for g in range(4): a(f"v_readlane_b32 s{S_G1+g}, v41, {8*(g+1)}")
    a(f"v_readlane_b32 s{S_N}, v40, 39")
    a("v_and_b32 v42, -32, v41")
    a(f"v_cmp_le_u32 vcc, s{S_G1}, v42")
    a(f"v_cndmask_b32 v43, 0, 1, vcc")
    for g in range(1,4):
        a(f"v_cmp_le_u32 vcc, s{S_G1+g}, v42")
        a(f"v_addc_co_u32 v43, vcc, 0, v43, vcc")
    a("v_lshlrev_b32 v43, 3, v43")
    a(f"v_sub_u32 v43, v{V_LANE}, v43")
    a("v_cmp_lt_i32 vcc, 14, v43")
    a("v_cmp_lt_u32 s[70:71], 0, v37")
    a("s_and_b64 vcc, vcc, s[70:71]")
    a("s_cbranch_vccz K2_DENSE")
    AG=[None,97,98,99,100]
    a(f"s_add_u32 s97, s{S_G1}, 31")
    a("s_and_b32 s97, s97, -32")
    for g in range(2,5):
        a(f"s_sub_u32 s{AG[g]}, s{S_G1+g-1}, s{S_G1+g-2}")
        a(f"s_add_u32 s{AG[g]}, s{AG[g]}, 31")
        a(f"s_and_b32 s{AG[g]}, s{AG[g]}, -32")
        a(f"s_add_u32 s{AG[g]}, s{AG[g]}, s{AG[g-1]}")
    a(f"s_sub_u32 s{S_N}, s{S_N}, s{S_G1+3}")
    a(f"s_add_u32 s{S_N}, s{S_N}, s100")
    for g in range(1,5):
        a(f"s_sub_u32 s69, s{AG[g]}, s{S_G1+g-1}")
        a(f"v_mov_b32 v42, s69")
        a(f"v_cmp_le_u32 vcc, {8*g}, v{V_LANE}")
        if g==1: a(f"v_cndmask_b32 v43, 0, v42, vcc")
        else:    a(f"v_cndmask_b32 v43, v43, v42, vcc")
    a("v_add_u32 v41, v41, v43")
    a(f"v_and_b32 v43, 7, v{V_LANE}")
    for g in range(1,5): a(f"s_mov_b32 s{S_G1+g-1}, s{AG[g]}")
    a.label("K2_DENSE")
    a(f"s_add_u32 s{S_T}, s{S_N}, 31")
    a(f"s_lshr_b32 s{S_T}, s{S_T}, 5")
    a(f"s_mov_b32 s{S_RB}, 0")
    a(f"s_cmp_ge_u32 s{S_WAVE}, 8")
    a("s_cbranch_scc1 K2_GW2")
    a("v_and_b32 v43, 15, v43")
    a("v_lshl_or_b32 v41, v43, 16, v41")
    for k in range(4): a(f"ds_bpermute_b32 v{24+k}, v{CA(k)}, v41")
    a("s_waitcnt lgkmcnt(0)")
    for k in range(4):
        a(f"v_and_b32 v36, 0xffff, v{24+k}")
        a(f"v_add_u32 v{RK(k)}, v36, v{RK(k)}")
        a(f"v_xor_b32 v36, v36, v{RK(k)}")
        a(f"v_lshrrev_b32 v{RL(k)}, 16, v{24+k}")
        a(f"v_and_b32 v37, 7, v{DL(k)}")
        a(f"v_cmp_gt_u32 vcc, 32, v36")
        a(f"v_cndmask_b32 v{RL(k)}, v37, v{RL(k)}, vcc")
        a(f"v_and_b32 v{RK(k)}, 0xfff, v{RK(k)}")
    for pp,(k0,k1_) in ((V_PP,(0,1)),(V_PP2,(2,3))):
        a(f"v_lshl_or_b32 v{pp}, v{RL(k0)}, 12, v{RK(k0)}")
        a(f"v_lshl_or_b32 v36, v{RL(k1_)}, 12, v{RK(k1_)}")
        a(f"v_lshl_or_b32 v{pp}, v36, 16, v{pp}")
    stamp(4)
    a(f"s_cmp_lg_u32 s{S_FIRST}, 0")
    a("s_cbranch_scc1 K2_CLEAN")
    a("s_branch K2_ROUND")
    a.label("K2_GW2")
    a(f"s_cmp_eq_u32 s{S_FIRST}, 0")
    a("s_cbranch_scc1 K2_ROUND")
    a("s_branch K2_WDONE")
    a.label("K2_ROUND")
    lane_tid()
    a(f"s_cmp_ge_u32 s{S_WAVE}, 8")
    a("s_cbranch_scc1 K2_RND2")
    load_recs(True)
    zero512(L_S2, L_S2+(TCAP+4)*2048, 24)
    pad512(24)
    a("s_waitcnt vmcnt(0) lgkmcnt(0)")
    for k,(rec,val) in enumerate(RECS):
        pp=V_PP if k<2 else V_PP2
        sh=16*(k%2)
        a(f"v_bfe_u32 v{DL(k)}, v{rec}, 24, 6")
        a(f"v_bfe_u32 v{RK(k)}, v{pp}, {sh}, 12")
        a(f"v_bfe_u32 v{RL(k)}, v{pp}, {sh+12}, 4")
    a.label("K2_RND2")
    a("s_barrier")
    a(f"s_cmp_ge_u32 s{S_WAVE}, 8")
    a("s_cbranch_scc1 K2_WDONE")
    a.label("K2_CLEAN")
    a("s_mov_b32 s67, 0x7ffe00")
    a("s_mov_b32 s68, 0xffff0000")
    a(f"s_lshl_b32 s69, s{S_RB}, 5")
    def write_rec(rec, dl, pos, rel, valid, tag):
        w0,w1_,W2,W3=rec,rec+1,rec+2,rec+3
        Pp,AD,A2,VAL,INF,SL,ONE,DLT=24,25,26,28,29,30,31,32
        a(f"v_subrev_u32 v{Pp}, s69, v{pos}")
        a(f"v_cmp_gt_u32 vcc, {TCAP*32}, v{Pp}")
        a(f"s_and_b64 vcc, vcc, s[{valid}:{valid+1}]")
        a("s_and_saveexec_b64 s[70:71], vcc")
        a(f"s_cbranch_execz K2_WR{tag}")
        a(f"v_lshlrev_b32 v{AD}, 2, v{Pp}")
        a(f"v_and_b32 v{A2}, s67, v{w0}")
        a(f"v_add_u32 v{AD}, {L_OFF}, v{AD}")
        a(f"ds_write_b32 v{AD}, v{A2}")
        a(f"v_lshlrev_b32 v{A2}, 5, v{rel}")
        a(f"v_and_or_b32 v{INF}, v{W3}, s68, v{A2}")
        a(f"v_mov_b32 v{VAL}, v{w1_}")
        a(f"v_lshlrev_b32 v{AD}, 3, v{Pp}")
        a(f"v_add_u32 v{AD}, {L_EI}, v{AD}")
        a(f"ds_write_b64 v{AD}, v[{VAL}:{INF}]")
        a(f"v_lshrrev_b32 v{AD}, 3, v{Pp}")
        a(f"v_lshlrev_b32 v{AD}, 9, v{AD}")
        a(f"v_and_b32 v{A2}, 7, v{Pp}")
        a(f"v_lshl_add_u32 v{AD}, v{A2}, 1, v{AD}")
        a(f"v_and_b32 v{SL}, 7, v{rel}")
        a(f"v_lshl_add_u32 v{AD}, v{SL}, 6, v{AD}")
        a(f"v_lshrrev_b32 v{DLT}, 3, v{dl}")
        a(f"v_lshrrev_b32 v{A2}, 5, v{Pp}")
        a(f"v_sub_u32 v{DLT}, v{DLT}, v{A2}")
        a(f"v_add_u32 v{DLT}, {TCAP-1}, v{DLT}")
        a(f"v_lshlrev_b32 v{DLT}, 11, v{DLT}")
        a(f"v_cmp_lt_u32 vcc, 7, v{rel}")
        a(f"v_cndmask_b32 v{DLT}, 0, v{DLT}, vcc")
        a(f"v_add_u32 v{AD}, v{AD}, v{DLT}")
        a(f"v_mov_b32 v{ONE}, 0x3f80")
        a(f"ds_write_b16 v{AD}, v{ONE} offset:{L_S2}")
        a(f"ds_write_b16 v{AD}, v{W2} offset:{L_S2+16}")
        a(f"ds_write_b16_d16_hi v{AD}, v{W2} offset:{L_S2+32}")
        a(f"ds_write_b16 v{AD}, v{W3} offset:{L_S2+48}")
        a.label(f"K2_WR{tag}")
        a("s_mov_b64 exec, s[70:71]")
    for k,(rec,val) in enumerate(RECS): write_rec(rec,DL(k),RK(k),RL(k),val,"ABCD"[k])
    a.label("K2_WDONE")
    a(f"s_cmp_eq_u32 s{S_FIRST}, 0")
    a("s_cbranch_scc1 K2_NOWX")
    a("s_waitcnt vmcnt(0)")
    a(f"s_mov_b32 s55, {f2u(-LOG2E)}")
    a(f"v_lshlrev_b32 v36, 16, v{V_WD}")
    a(f"v_and_b32 v37, 0xffff0000, v{V_WD}")
    a("v_mul_f32 v36, s55, v36")
    a("v_mul_f32 v37, s55, v37")
    a(f"v_cvt_pk_bf16_f32 v{V_WD}, v36, v37")
    a.label("K2_NOWX")
    a("s_waitcnt lgkmcnt(0)")
    a("s_barrier")
    stamp(5)
    a(f"s_sub_u32 s55, s{S_T}, s{S_RB}")
    a(f"s_min_u32 s55, s55, {TCAP}")
    a(f"s_add_u32 s{S_PER}, s55, 3")
    a(f"s_lshr_b32 s{S_PER}, s{S_PER}, 2")
    a(f"s_mul_i32 s{S_TL}, s{S_PER}, s{S_SUB}")
    a(f"s_add_u32 s{S_TE}, s{S_TL}, s{S_PER}")
    a(f"s_min_u32 s{S_TE}, s{S_TE}, s55")
    a(f"s_min_u32 s{S_TL}, s{S_TL}, s55")
    a(f"s_add_u32 s55, s{S_RB}, {TCAP}")
    a(f"s_cmp_ge_u32 s55, s{S_T}")
    a(f"s_cselect_b32 s{S_PRE}, 1, 0")
    a(f"s_cmp_eq_u64 s[{S_OVM}:{S_OVM+1}], 0")
    a(f"s_cselect_b32 s{S_PRE}, s{S_PRE}, 0")
    a(f"s_lshl_b32 s55, s{S_OCH}, 11")
    a(f"s_cmp_ge_u32 s55, s{S_OCN}")
    a(f"s_cselect_b32 s{S_PRE}, s{S_PRE}, 0")
    def issue_loads(tll):
        a(f"s_lshl_b32 s67, s{tll}, 7")
        a(f"s_add_u32 s68, s67, {L_OFF}")
        a(f"v_lshl_add_u32 v{V_TA}, v{V_HH16}, 2, s68")
        for q in range(4): a(f"ds_read_b128 {vr(G+4*q)}, v{V_TA} offset:{16*q}")
        a(f"s_lshl_b32 s68, s{tll}, 8")
        a(f"v_add_u32 v{V_TB}, s68, v{V_EIA}")
        a(f"ds_read_b64 v[{V_TA}:{V_TB}], v{V_TB}")
    def issue_loads2():
        for q in range(8):
            a(f"v_pk_add_f32 v[{G+2*q}:{G+2*q+1}], v[{G+2*q}:{G+2*q+1}], v[{V_LOFF}:{V_LOFF+1}] op_sel_hi:[1,0]")
        a(f"v_add_u32 v{V_TA}, v{V_TA}, v{V_HH16}")
        a(f"v_mov_b32 v{V_INF}, v{V_TB}")
        if 'noea' not in abl: a(f"buffer_load_dwordx4 {vr(X1)}, v{V_TA}, s[32:35], 0 offen")
        if 'noload' not in abl:
            for r in range(16): a(f"buffer_load_dword v{G+r}, v{G+r}, s[36:39], 0 offen")
    F1=[G,G+4,G+8,G+12,W3L,W3H,ATL,ATH]
    F2=[L+4*i for i in range(8)]
    def load_f(regs, img, l16):
        a(f"s_lshl_b32 s67, s{S_WAVE}, 13")
        a(f"s_add_u32 s67, s67, {img}")
        for ks in range(8):
            if ks==4: a("s_add_u32 s67, s67, 4096")
            a(f"buffer_load_dwordx4 {vr(regs[ks])}, v{l16}, s[40:43], s67 offen offset:{(ks%4)*1024}")
    a(f"s_mov_b32 s{S_CUR}, -1")
    a(f"s_mov_b32 s{S_ATG}, -1")
    a(f"s_mov_b32 s{S_CONT}, -1")
    a(f"s_mov_b32 s15, 0")
    a(f"s_cmp_ge_u32 s{S_TL}, s{S_TE}")
    a("s_cbranch_scc1 K2_LOOPEND")
    issue_loads(S_TL)
    a("s_waitcnt lgkmcnt(0)")
    issue_loads2()
    stamp(6)
    a(f"s_add_u32 s55, s{S_TL}, s{S_RB}")
    a("s_lshl_b32 s55, s55, 5")
    a("s_mov_b32 s67, 0")
    a("s_mov_b32 s68, 0")
    for g in range(4):
        a(f"s_cmp_ge_u32 s55, s{S_G1+g}")
        a(f"s_cselect_b32 s68, s{S_G1+g}, s68")
        a(f"s_addc_u32 s67, s67, 0")
    a("s_cmp_lt_u32 s68, s55")
    a(f"s_cselect_b32 s{S_CONT}, s67, -1")
    a(f"s_cmp_eq_u32 s{S_SUB}, 0")
    a(f"s_cselect_b32 s{S_CONT}, -1, s{S_CONT}")
    fl=[0]
    def flush():
        fl[0]+=1; tg=f"F{fl[0]}"
        a(f"s_lshl_b32 s67, s{S_W}, 7")
        a(f"s_add_u32 s67, s67, {L_WXF}")
        a(f"v_add_u32 v{V_TA}, s67, v{V_HH16}")
        WX=[L+8,L+12,H+8,H+12]
        for i in range(4): a(f"ds_read_b128 {vr(WX[i])}, v{V_TA} offset:{32*i}")
        a(f"s_lshl_b32 s67, s{S_CUR}, 3")
        a(f"s_mov_b32 s68, s{S_CUR}")
        a(f"s_cmp_eq_u32 s{S_CUR}, s{S_CONT}")
        a(f"s_cbranch_scc0 K2_{tg}A")
        a(f"s_cmp_eq_u32 s{S_FIRST}, 0")
        a(f"s_cbranch_scc1 K2_{tg}A")
        a(f"s_lshl_b32 s67, s{S_SUB}, 3")
        a("s_add_u32 s67, s67, 32")
        a(f"s_add_u32 s68, s{S_SUB}, 4")
        a.label(f"K2_{tg}A")
        a(f"s_mul_i32 s67, s67, {MI_STR}")
        a(f"s_lshl_b32 s69, s{S_W}, 7")
        a("s_add_u32 s67, s67, s69")
        a(f"s_add_u32 s67, s67, {L_MI}")
        a(f"v_bfe_u32 v{V_TA}, v{V_LOFF}, 4, 3")
        a(f"v_mul_u32_u24 v{V_TA}, {MI_STR}, v{V_TA}")
        a(f"v_lshrrev_b32 v{T}, 1, v{V_HH16}")
        a(f"v_add3_u32 v{V_TA}, v{V_TA}, v{T}, s67")
        for q in range(8): a(f"v_cvt_pk_bf16_f32 v{D2L+q}, v{D2L+2*q}, v{D2L+2*q+1}")
        for q in range(7,-1,-1): a(f"v_cvt_pk_bf16_f32 v{D2H+8+q}, v{D2H+2*q}, v{D2H+2*q+1}")
        D3=D2L+8
        a("s_waitcnt lgkmcnt(0)")
        a(f"v_mfma_f32_32x32x16_bf16 {vr(D3,16)}, {vr(WX[0])}, {vr(D2L)}, 0")
        a(f"v_mfma_f32_32x32x16_bf16 {vr(D3,16)}, {vr(WX[1])}, {vr(D2L+4)}, {vr(D3,16)}")
        a(f"v_mfma_f32_32x32x16_bf16 {vr(D3,16)}, {vr(WX[2])}, {vr(D2H+8)}, {vr(D3,16)}")
        a(f"v_mfma_f32_32x32x16_bf16 {vr(D3,16)}, {vr(WX[3])}, {vr(D2H+12)}, {vr(D3,16)}")
        a("s_mov_b32 exec_lo, 0x11111111")
        a("s_mov_b32 exec_hi, 0x11111111")
        a(f"s_cmp_eq_u32 s{S_FIRST}, 0")
        a(f"s_cbranch_scc1 K2_{tg}B")
        for q in range(0,8,2):
            i=8*((2*q)>>2)
            a(f"ds_write_b64 v{V_TA}, v[{D2L+q}:{D2L+q+1}] offset:{2*i}")
            a(f"ds_write_b64 v{V_TA}, v[{D2H+8+q}:{D2H+8+q+1}] offset:{64+2*i}")
        a(f"s_branch K2_{tg}C")
        a.label(f"K2_{tg}B")
        for q in range(8):
            i=((2*q)&3)+8*((2*q)>>2)
            a(f"ds_pk_add_bf16 v{V_TA}, v{D2L+q} offset:{2*i}")
            a(f"ds_pk_add_bf16 v{V_TA}, v{D2H+8+q} offset:{64+2*i}")
        a.label(f"K2_{tg}C")
        a(f"s_lshl_b32 s67, s68, 7")
        a(f"s_mul_i32 s69, s{S_W}, {1024-128}")
        a("s_add_u32 s67, s67, s69")
        a(f"s_add_u32 s67, s67, {L_POS}")
        a("s_mov_b64 exec, 0xffffffff")
        a(f"v_add_u32 v{T}, s67, v{V_LOFF}")
        a(f"s_cmp_eq_u32 s{S_FIRST}, 0")
        a(f"s_cbranch_scc1 K2_{tg}D")
        a(f"ds_write_b32 v{T}, v{D3}")
        a(f"s_branch K2_{tg}E")
        a.label(f"K2_{tg}D")
        a(f"ds_add_f32 v{T}, v{D3}")
        a.label(f"K2_{tg}E")
        a("s_mov_b64 exec, -1")
    a.label("K2_LOOP")
    if 'noprio' not in abl:
        a(f"s_sub_u32 s55, s{S_TE}, s{S_TL}")
        a("s_cmp_ge_u32 s55, 4")
        a("s_cbranch_scc1 K2_P3")
        a("s_cmp_eq_u32 s55, 3")
        a("s_cbranch_scc1 K2_P2")
        a("s_cmp_eq_u32 s55, 2")
        a("s_cbranch_scc1 K2_P1")
        a("s_setprio 0")
        a("s_branch K2_PD")
        a.label("K2_P1")
        a("s_setprio 1")
        a("s_branch K2_PD")
        a.label("K2_P2")
        a("s_setprio 2")
        a("s_branch K2_PD")
        a.label("K2_P3")
        a("s_setprio 3")
        a.label("K2_PD")
    a(f"s_add_u32 s55, s{S_TL}, s{S_RB}")
    a("s_lshl_b32 s55, s55, 5")
    a(f"s_mov_b32 s{S_GB}, 0")
    for g in range(4):
        a(f"s_cmp_ge_u32 s55, s{S_G1+g}")
        a(f"s_addc_u32 s{S_GB}, s{S_GB}, 0")
    a("s_add_u32 s55, s55, 31")
    a(f"s_sub_u32 s67, s{S_N}, 1")
    a("s_min_u32 s55, s55, s67")
    a(f"s_mov_b32 s{S_STR}, 0")
    for g in range(4):
        a(f"s_cmp_ge_u32 s55, s{S_G1+g}")
        a(f"s_addc_u32 s{S_STR}, s{S_STR}, 0")
    a(f"s_sub_u32 s{S_STR}, s{S_STR}, s{S_GB}")
    a("s_movk_i32 s67, 0x1e0")
    a(f"v_and_or_b32 v{V_TA}, v{V_INF}, s67, v{V_HH16}")
    a(f"ds_read_b128 {vr(X2)}, v{V_TA}")
    a(f"s_cmp_eq_u32 s{S_GB}, s{S_ATG}")
    a("s_cbranch_scc1 K2_ATOK")
    a(f"s_lshl_b32 s67, s{S_GB}, 4")
    a(f"s_mul_i32 s68, s{S_W}, 2560")
    a("s_add_u32 s67, s67, s68")
    a(f"s_add_u32 s67, s67, {L_AT}")
    a(f"v_mul_u32_u24 v{V_TA}, 20, v{V_LOFF}")
    a(f"v_add3_u32 v{V_TA}, v{V_TA}, v{V_HH16}, s67")
    a(f"ds_read_b128 {vr(ATL)}, v{V_TA}")
    a(f"ds_read_b128 {vr(ATH)}, v{V_TA} offset:{32*80}")
    a(f"s_mov_b32 s{S_ATG}, s{S_GB}")
    a("s_mov_b32 s67, 0x05040100")
    a("s_mov_b32 s68, 0x07060100")
    a("s_waitcnt lgkmcnt(0)")
    a("s_mov_b32 exec_lo, 0")
    a(f"v_perm_b32 v{ATL+3}, v{V_WD}, v{ATL+3}, s67")
    a(f"v_perm_b32 v{ATH+3}, v{V_WD}, v{ATH+3}, s68")
    a("s_mov_b64 exec, -1")
    a.label("K2_ATOK")
    a("s_waitcnt vmcnt(0)")
    for r in range(16): a(f"v_lshlrev_b32 v{L+r}, 16, v{G+r}")
    a("s_waitcnt lgkmcnt(0)")
    a("s_mov_b32 s67, 0xffff0000")
    a("s_mov_b32 exec_lo, 0")
    a(f"v_and_or_b32 v{X2+3}, v{V_INF}, s67, v{X2+3}")
    a("s_mov_b64 exec, -1")
    a(f"v_mfma_f32_32x32x16_bf16 {vr(H,16)}, {vr(X1)}, {vr(W3H)}, {vr(G,16)}")
    a(f"v_mfma_f32_32x32x16_bf16 {vr(L,16)}, {vr(X1)}, {vr(W3L)}, {vr(L,16)}")
    a(f"v_mfma_f32_32x32x16_bf16 {vr(H,16)}, {vr(X2)}, {vr(ATH)}, {vr(H,16)}")
    a(f"v_mfma_f32_32x32x16_bf16 {vr(L,16)}, {vr(X2)}, {vr(ATL)}, {vr(L,16)}")
    a(f"s_add_u32 s{S_NXT}, s{S_TL}, 1")
    a("s_nop 3")
    issue_loads(S_NXT)
    a(f"s_lshl_b32 s67, s{S_TL}, 11")
    a(f"v_add_u32 v{T+7}, s67, v{V_S2A}")
    a(f"ds_read_b128 {vr(S2A)}, v{T+7}")
    a(f"ds_read_b128 {vr(X2)}, v{T+7} offset:512")
    def silu(base, first):
        for c in range(2):
            y=base+8*c
            if 'notrans' not in abl:
                for j in range(8): a(f"v_exp_f32 v{T+j}, v{y+j}")
            for j in range(4): a(f"v_pk_add_f32 v[{T+2*j}:{T+2*j+1}], v[{T+2*j}:{T+2*j+1}], 1.0")
            if 'notrans' not in abl:
                for j in range(8): a(f"v_rcp_f32 v{T+j}, v{T+j}")
            for j in range(4): a(f"v_pk_mul_f32 v[{T+2*j}:{T+2*j+1}], v[{T+2*j}:{T+2*j+1}], v[{y+2*j}:{y+2*j+1}]")
            for j in range(4): a(f"v_cvt_pk_bf16_f32 v{base+4*c+j}, v{T+2*j}, v{T+2*j+1}")
            if first and c==0:
                a(f"s_cmp_ge_u32 s{S_NXT}, s{S_TE}")
                a("s_cbranch_scc1 K2_NONEXT")
                a("s_waitcnt lgkmcnt(2)")
                issue_loads2()
                a("s_branch K2_NONEXT2")
                a.label("K2_NONEXT")
                a(f"s_cmp_eq_u32 s{S_PRE}, 0")
                a("s_cbranch_scc1 K2_NONEXT2")
                a("s_waitcnt lgkmcnt(2)")
                a(f"v_mbcnt_lo_u32_b32 v{V_TA}, -1, 0")
                a(f"v_mbcnt_hi_u32_b32 v{V_TA}, -1, v{V_TA}")
                a(f"v_lshlrev_b32 v{V_TA}, 4, v{V_TA}")
                load_f(F1, IMG_WH1, V_TA)
                a("s_mov_b32 s15, 1")
                a.label("K2_NONEXT2")
    silu(H,True)
    silu(L,False)
    a(f"s_mov_b32 s{S_PG}, s{S_GB}")
    a.label("K2_PASS")
    a(f"s_cmp_eq_u32 s{S_PG}, s{S_CUR}")
    a("s_cbranch_scc1 K2_ACC")
    a(f"s_cmp_lt_i32 s{S_CUR}, 0")
    a("s_cbranch_scc1 K2_NOFL")
    flush()
    a.label("K2_NOFL")
    a(f"s_mov_b32 s{S_CUR}, s{S_PG}")
    a("s_waitcnt lgkmcnt(0)")
    a(f"v_mfma_f32_32x32x16_bf16 {vr(D2L,16)}, {vr(L)}, {vr(S2A)}, 0")
    a(f"v_mfma_f32_32x32x16_bf16 {vr(D2H,16)}, {vr(H)}, {vr(S2A)}, 0")
    a("s_branch K2_ACC2")
    a.label("K2_ACC")
    a("s_waitcnt lgkmcnt(0)")
    a(f"v_mfma_f32_32x32x16_bf16 {vr(D2L,16)}, {vr(L)}, {vr(S2A)}, {vr(D2L,16)}")
    a(f"v_mfma_f32_32x32x16_bf16 {vr(D2H,16)}, {vr(H)}, {vr(S2A)}, {vr(D2H,16)}")
    a.label("K2_ACC2")
    a(f"v_mfma_f32_32x32x16_bf16 {vr(D2L,16)}, {vr(L+4)}, {vr(X2)}, {vr(D2L,16)}")
    a(f"v_mfma_f32_32x32x16_bf16 {vr(D2H,16)}, {vr(H+4)}, {vr(X2)}, {vr(D2H,16)}")
    a(f"s_cmp_eq_u32 s{S_STR}, 0")
    a("s_cbranch_scc1 K2_NEXT")
    a(f"s_mov_b32 s{S_STR}, 0")
    a(f"s_add_u32 s{S_PG}, s{S_GB}, 1")
    a(f"s_add_u32 s67, s{S_GB}, {TCAP}")
    a("s_lshl_b32 s67, s67, 11")
    a(f"v_add_u32 v{T+7}, s67, v{V_S2A}")
    a("s_nop 7")
    a(f"ds_read_b128 {vr(S2A)}, v{T+7}")
    a(f"ds_read_b128 {vr(X2)}, v{T+7} offset:512")
    a("s_branch K2_PASS")
    a.label("K2_NEXT")
    a(f"s_add_u32 s{S_TL}, s{S_TL}, 1")
    a(f"s_cmp_lt_u32 s{S_TL}, s{S_TE}")
    a("s_cbranch_scc1 K2_LOOP")
    flush()
    a.label("K2_LOOPEND")
    a("s_setprio 0")
    stamp(7)
    a(f"s_cmp_eq_u32 s{S_FIRST}, 0")
    a("s_cbranch_scc1 K2_NOSAVE")
    for g in range(4): a(f"s_mov_b32 s{8+g}, s{S_G1+g}")
    a(f"s_mov_b32 s12, s{S_PER}")
    a.label("K2_NOSAVE")
    a(f"s_mov_b32 s{S_FIRST}, 0")
    a(f"s_cmp_lg_u32 s{S_PRE}, 0")
    a("s_cbranch_scc1 K2_EPI")
    a("s_waitcnt vmcnt(0) lgkmcnt(0)")
    a(f"s_add_u32 s{S_RB}, s{S_RB}, {TCAP}")
    a(f"s_cmp_lt_u32 s{S_RB}, s{S_T}")
    a("s_cbranch_scc0 K2_OVNEXT")
    a("s_barrier")
    a("s_branch K2_ROUND")
    a.label("K2_OVNEXT")
    a(f"s_lshl_b32 s55, s{S_OCH}, 11")
    a(f"s_cmp_lt_u32 s55, s{S_OCN}")
    a("s_cbranch_scc1 K2_OVGO")
    a(f"s_cmp_eq_u64 s[{S_OVM}:{S_OVM+1}], 0")
    a("s_cbranch_scc1 K2_EPI")
    a(f"s_ff1_i32_b64 s{S_OP}, s[{S_OVM}:{S_OVM+1}]")
    a(f"s_bitset0_b64 s[{S_OVM}:{S_OVM+1}], s{S_OP}")
    a(f"s_lshl_b32 s55, s{S_OP}, 2")
    a(f"s_add_u32 s55, s55, {WS_OVC}")
    a("v_mov_b32 v100, 0")
    a("buffer_load_dword v100, v100, s[40:43], s55 offen")
    a("s_waitcnt vmcnt(0)")
    a(f"v_readfirstlane_b32 s{S_OCN}, v100")
    a(f"s_min_u32 s{S_OCN}, s{S_OCN}, {EPP}")
    a(f"s_mov_b32 s{S_OCH}, 0")
    a("s_branch K2_OVNEXT")
    a.label("K2_OVGO")
    a("s_mov_b32 s69, s55")
    a("s_barrier")
    lane_tid()
    a(f"s_mul_i32 s{S_RB0}, s{S_OP}, 40000")
    a(f"s_add_u32 s{S_RB0}, s{S_RB0}, {WS_OVF}")
    a("s_lshl_b32 s67, s69, 4")
    a(f"s_add_u32 s{S_RB0}, s{S_RB0}, s67")
    a(f"s_add_u32 s{S_RB1}, s{S_RB0}, 16384")
    a(f"s_add_u32 s{S_OCH}, s{S_OCH}, 1")
    a(f"s_cmp_ge_u32 s{S_WAVE}, 8")
    a("s_cbranch_scc1 K2_OVG2")
    load_recs(True)
    a(f"v_lshlrev_b32 v120, 2, v{V_TID}")
    a(f"v_add_u32 v120, {L_CNT}, v120")
    a("v_mov_b32 v121, 0")
    a(f"v_cmp_gt_u32 vcc, 40, v{V_TID}")
    a("s_and_saveexec_b64 s[70:71], vcc")
    a("ds_write_b32 v120, v121")
    a("s_mov_b64 exec, s[70:71]")
    a("s_waitcnt vmcnt(0) lgkmcnt(0)")
    for k,(rec,val) in enumerate(((100,S_V0),(104,S_V1),(108,S_V2),(112,S_V3))):
        a(f"v_add_u32 v120, s69, v{V_TID}")
        if k: a(f"v_add_u32 v120, {512*k}, v120")
        a(f"v_cmp_gt_u32 s[{val}:{val+1}], s{S_OCN}, v120")
        a(f"v_and_b32 v121, 0xff, v{rec}")
        a("v_cmp_eq_u32 vcc, s2, v121")
        a(f"s_and_b64 s[{val}:{val+1}], s[{val}:{val+1}], vcc")
    a.label("K2_OVG2")
    a("s_barrier")
    a("s_branch K2_BATCH")
    a.label("K2_EPI")
    lane_tid()
    a(f"v_lshlrev_b32 v123, 4, v{V_LANE}")
    a("s_cmp_lg_u32 s15, 0")
    a("s_cbranch_scc1 K2_F1OK")
    load_f(F1, IMG_WH1, 123)
    a.label("K2_F1OK")
    load_f(F2, IMG_WH2, 123)
    a(f"v_and_b32 v116, 15, v{V_LANE}")
    a(f"v_lshrrev_b32 v117, 4, v{V_LANE}")
    a("v_xor_b32 v118, v116, v117")
    a("v_lshlrev_b32 v118, 4, v118")
    a("v_lshl_add_u32 v118, v116, 9, v118")
    a(f"v_add_u32 v118, {L_HT}, v118")
    a(f"v_mul_u32_u24 v119, {MI_STR}, v116")
    a("v_lshl_add_u32 v119, v117, 4, v119")
    a(f"v_add_u32 v119, {L_MI}, v119")
    XF0=92; XF1=24; UC=104
    XF=lambda step: XF0 if step%2==0 else XF1
    def rdx(step):
        ks=step%8
        if step<8:
            a(f"v_xor_b32 v120, {ks<<6}, v118")
            for ct in range(3): a(f"ds_read_b128 {vr(XF(step)+4*ct)}, v120 offset:{ct*8192}")
        else:
            for ct in range(3): a(f"ds_read_b128 {vr(XF(step)+4*ct)}, v119 offset:{ct*16*MI_STR+ks*64}")
    def gemm(s0):
        rdx(s0)
        for step in range(s0,s0+8):
            if step<s0+7:
                rdx(step+1); a("s_waitcnt lgkmcnt(3)")
            else: a("s_waitcnt lgkmcnt(0)")
            if step==0: a("s_waitcnt vmcnt(8)")
            if step==8: a("s_waitcnt vmcnt(0)")
            wf=F1[step] if step<8 else F2[step-8]
            for ct in range(3):
                c='0' if step==0 else vr(UC+4*ct)
                a(f"v_mfma_f32_16x16x32_bf16 {vr(UC+4*ct)}, {vr(wf)}, {vr(XF(step)+4*ct)}, {c}")
    gemm(0)
    a("s_barrier")
    stamp(8)
    a(f"v_lshrrev_b32 v120, 7, v{V_TID}")
    a(f"v_mul_u32_u24 v120, {MI_STR}, v120")
    a(f"v_and_b32 v121, 127, v{V_TID}")
    a("v_lshl_add_u32 v120, v121, 2, v120")
    a(f"v_add_u32 v120, {L_MI}, v120")
    a("s_mov_b32 s58, 0xffff0000")
    for s in range(1,4):
        a(f"s_mul_i32 s55, s12, {32*s}")
        a("s_mov_b32 s56, 0")
        for g in range(4):
            a(f"s_cmp_ge_u32 s55, s{8+g}")
            a("s_addc_u32 s56, s56, 0")
        a(f"s_mov_b32 s{59+s}, s56")
        a(f"s_mul_i32 s57, s56, {8*MI_STR}")
        a("v_add_u32 v121, s57, v120")
        a("ds_read_b32 v40, v121")
        a(f"ds_read_b32 v41, v120 offset:{(32+8*s)*MI_STR}")
        a("s_waitcnt lgkmcnt(0)")
        a("v_lshlrev_b32 v36, 16, v40")
        a("v_and_b32 v37, s58, v40")
        a("v_lshlrev_b32 v38, 16, v41")
        a("v_and_b32 v39, s58, v41")
        a("v_add_f32 v36, v36, v38")
        a("v_add_f32 v37, v37, v39")
        a("v_cvt_pk_bf16_f32 v40, v36, v37")
        a("ds_write_b32 v121, v40")
    a("s_waitcnt lgkmcnt(0)")
    a("s_barrier")
    gemm(8)
    a(f"s_lshl_b32 s55, s{S_WAVE}, 1")
    a("v_lshrrev_b32 v120, 1, v117")
    a("v_add_u32 v120, s55, v120")
    a("v_xor_b32 v120, v120, v116")
    a("v_lshlrev_b32 v120, 4, v120")
    a("v_lshl_add_u32 v120, v116, 9, v120")
    a("v_and_b32 v121, 1, v117")
    a("v_lshl_add_u32 v120, v121, 3, v120")
    a(f"v_add_u32 v120, {L_HT}, v120")
    for ct in range(3): a(f"ds_read_b64 v[{36+2*ct}:{37+2*ct}], v120 offset:{ct*8192}")
    a("s_mul_i32 s55, s2, 40")
    a("s_lshl_b32 s55, s55, 9")
    a(f"s_lshl_b32 s56, s{S_WAVE}, 5")
    a("s_add_u32 s55, s55, s56")
    a("v_lshlrev_b32 v121, 9, v116")
    a("v_lshl_add_u32 v121, v117, 3, v121")
    a(f"s_mov_b32 s56, {f2u(-LOG2E)}")
    a("s_mov_b32 s57, 0xffff0000")
    a("s_waitcnt lgkmcnt(0)")
    for ct in range(3):
        u=UC+4*ct
        for r in range(4): a(f"v_mul_f32 v{8+r}, s56, v{u+r}")
        for r in range(4): a(f"v_exp_f32 v{8+r}, v{8+r}")
        for r in range(4): a(f"v_add_f32 v{8+r}, 1.0, v{8+r}")
        for r in range(4): a(f"v_rcp_f32 v{8+r}, v{8+r}")
        for r in range(4): a(f"v_mul_f32 v{8+r}, v{8+r}, v{u+r}")
        h0,h1=36+2*ct,37+2*ct
        a(f"v_lshlrev_b32 v12, 16, v{h0}")
        a(f"v_and_b32 v13, s57, v{h0}")
        a(f"v_lshlrev_b32 v14, 16, v{h1}")
        a(f"v_and_b32 v15, s57, v{h1}")
        for r in range(4): a(f"v_add_f32 v{8+r}, v{8+r}, v{12+r}")
        a(f"v_cvt_pk_bf16_f32 v{16+2*ct}, v8, v9")
        a(f"v_cvt_pk_bf16_f32 v{17+2*ct}, v10, v11")
        if ct==2:
            a("v_cmp_gt_u32 vcc, 8, v116")
            a("s_and_saveexec_b64 s[70:71], vcc")
        a(f"s_add_u32 s58, s55, {ct*8192}")
        a(f"buffer_store_dwordx2 v[{16+2*ct}:{17+2*ct}], v121, s[44:47], s58 offen")
        if ct==2: a("s_mov_b64 exec, s[70:71]")
    stamp(9)
    rstamp(15)
    stamp_out()
    a(f"s_cmp_ge_u32 s{S_WAVE}, 2")
    a("s_cbranch_scc1 K2_END")
    a(f"v_mbcnt_lo_u32_b32 v{V_LANE}, -1, 0")
    a(f"v_mbcnt_hi_u32_b32 v{V_LANE}, -1, v{V_LANE}")
    a(f"s_lshl_b32 s55, s{S_WAVE}, 6")
    a(f"v_add_u32 v8, s55, v{V_LANE}")
    a("v_mul_u32_u24 v9, 0x5556, v8")
    a("v_lshrrev_b32 v9, 16, v9")
    a("v_mul_u32_u24 v10, 3, v9")
    a("v_sub_u32 v10, v8, v10")
    a("v_lshrrev_b32 v15, 3, v9")
    a("v_and_b32 v16, 7, v9")
    a("v_lshl_add_u32 v16, v16, 2, v10")
    a("v_lshlrev_b32 v16, 2, v16")
    a(f"v_add_u32 v16, {L_POS+4}, v16")
    a("v_lshl_add_u32 v11, v15, 7, v16")
    for w in range(4): a(f"ds_read_b32 v{20+w}, v11 offset:{w*1024}")
    for s in range(1,4):
        for w in range(4): a(f"ds_read_b32 v{20+4*s+w}, v16 offset:{w*1024+(4+s)*128}")
    srd(a,72,6,N*6)
    a("s_mul_i32 s55, s2, 240")
    a("v_lshlrev_b32 v13, 1, v8")
    a("v_cmp_gt_u32 vcc, 120, v8")
    a("s_and_saveexec_b64 s[70:71], vcc")
    a("s_cbranch_execz K2_END")
    a("buffer_load_ushort v14, v13, s[72:75], s55 offen")
    a("s_waitcnt lgkmcnt(0)")
    a("v_add_f32 v20, v20, v21")
    a("v_add_f32 v22, v22, v23")
    a("v_add_f32 v12, v20, v22")
    for s in range(1,4):
        b=20+4*s
        a(f"v_add_f32 v{b}, v{b}, v{b+1}")
        a(f"v_add_f32 v{b+2}, v{b+2}, v{b+3}")
        a(f"v_add_f32 v{b}, v{b}, v{b+2}")
        a(f"v_cmp_eq_u32 vcc, s{59+s}, v15")
        a(f"v_cndmask_b32 v{b}, 0, v{b}, vcc")
        a(f"v_add_f32 v12, v12, v{b}")
    a(f"s_mov_b32 s56, {f2u(-LN2)}")
    a("s_waitcnt vmcnt(0)")
    a("v_lshlrev_b32 v14, 16, v14")
    a("v_fma_f32 v14, v12, s56, v14")
    a("v_cvt_pk_bf16_f32 v14, v14, v14")
    a(f"s_add_u32 s55, s55, {N*512}")
    a("buffer_store_short v14, v13, s[44:47], s55 offen")
    a.label("K2_END")
    a("s_endpgm")
    return a
```

```python
from asmgen import Asm
from k1 import *
TCAP=24
MI_STR=544
L_LUT=0
L_SEL=512
L_S2=4608
L_MI=L_S2+(TCAP+4)*2048
L_POS=L_MI+64*MI_STR
L_CNT=L_POS+4096
L_OVM=L_CNT+248
ZERO_BEG=L_S2; ZERO_END=L_CNT+256
L_AT=(ZERO_END+511)//512*512
L_HT=L_AT+20480
L_OFF=L_HT+20480
L_EI=L_OFF+TCAP*128
L_WXF=L_EI+TCAP*256
L_SB=L_WXF+512
K2_LDS=L_SB+64
NZ=(ZERO_END-ZERO_BEG+16383)//16384
assert ZERO_BEG+NZ*16384 <= L_HT
assert L_HT+48*512 <= K2_LDS and K2_LDS<=163840 and L_HT%512==0
PADOFF=0x500000
V_S2A=0; V_HH16=1; V_LOFF=2; V_WD=3; V_EIA=4; V_INF=5; V_TA=6; V_TB=7
W3L=8; W3H=12; ATL=16; ATH=20; X1=24; X2=28; S2A=32; T=36; G=44; L=60; H=76; D2L=92; D2H=108
V_PP=124; V_PP2=125; V_LANE=126; V_TMP=127; V_TMP2=123; V_TID=122
def vr(b,n=4): return f"v[{b}:{b+n-1}]"
S_WAVE=52; S_W=53; S_SUB=54; S_G1=56; S_N=60; S_T=61; S_TL=62; S_TE=63; S_CUR=64; S_ATG=65; S_RB=66
S_V0=76; S_V1=78; S_V2=16; S_V3=18; S_FIRST=80; S_PRE=81; S_OVM=82; S_OCH=84; S_OCN=85; S_OP=86; S_RB0=87; S_RB1=88; S_CONT=89
S_GB=92; S_STR=93; S_NXT=94; S_PER=95; S_PG=96

def gen_k2(dbg=False, abl=()):
    a=Asm()
    def stamp(i):
        if not dbg: return
        a(f"s_memtime s[90:91]")
        a("s_waitcnt lgkmcnt(0)")
        a(f"v_writelane_b32 v{V_TMP}, s90, {i}")
    def rstamp(i):
        if not dbg: return
        a(f"s_memrealtime s[90:91]")
        a("s_waitcnt lgkmcnt(0)")
        a(f"v_writelane_b32 v{V_TMP}, s90, {i}")
    def stamp_out():
        if not dbg: return
        a(f"s_cmp_eq_u32 s2, {dbg-1}")
        a(f"s_cbranch_scc0 K2_STX")
        a(f"v_mbcnt_lo_u32_b32 v{V_LANE}, -1, 0")
        a(f"v_mbcnt_hi_u32_b32 v{V_LANE}, -1, v{V_LANE}")
        a(f"s_lshl_b32 s90, s{S_WAVE}, 6")
        a(f"v_lshl_add_u32 v{V_LANE}, v{V_LANE}, 2, s90")
        a(f"s_mov_b64 exec, 0xffff")
        a(f"global_store_dword v{V_LANE}, v{V_TMP}, s[22:23]")
        a(f"s_mov_b64 exec, -1")
        a.label("K2_STX")
        a(f"s_cmp_eq_u32 s{S_WAVE}, 15")
        a("s_cbranch_scc0 K2_RT")
        a("s_memrealtime s[90:91]")
        a("s_waitcnt lgkmcnt(0)")
        a("v_mov_b32 v8, s26")
        a("v_mov_b32 v9, s90")
        a("s_lshl_b32 s90, s2, 3")
        a("s_add_u32 s90, s90, 0x2000000")
        a("v_mov_b32 v10, s90")
        a("global_store_dwordx2 v10, v[8:9], s[24:25]")
        a.label("K2_RT")
    def lane_tid():
        a(f"v_mbcnt_lo_u32_b32 v{V_LANE}, -1, 0")
        a(f"v_mbcnt_hi_u32_b32 v{V_LANE}, -1, v{V_LANE}")
        a(f"s_lshl_b32 s55, s{S_WAVE}, 6")
        a(f"v_add_u32 v{V_TID}, s55, v{V_LANE}")
    def pad_tables(tid16, t0):
        a(f"v_mov_b32 v{t0}, {PADOFF}")
        a(f"v_mov_b32 v{t0+1}, {15<<5}")
        a(f"v_mov_b32 v{t0+2}, {PADOFF}")
        a(f"v_mov_b32 v{t0+3}, {15<<5}")
        a(f"v_add_u32 v{t0+4}, {L_EI}, v{tid16}")
        a(f"v_cmp_gt_u32 vcc, {TCAP*16}, v{V_TID}")
        a("s_and_saveexec_b64 s[70:71], vcc")
        a(f"ds_write_b128 v{t0+4}, {vr(t0)}")
        a("s_mov_b64 exec, s[70:71]")
        a(f"v_mov_b32 v{t0+1}, {PADOFF}")
        a(f"v_mov_b32 v{t0+3}, {PADOFF}")
        a(f"v_add_u32 v{t0+4}, {L_OFF}, v{tid16}")
        a(f"v_cmp_gt_u32 vcc, {TCAP*8}, v{V_TID}")
        a("s_and_saveexec_b64 s[70:71], vcc")
        a(f"ds_write_b128 v{t0+4}, {vr(t0)}")
        a("s_mov_b64 exec, s[70:71]")
    def zero_region(tid16, t0, beg, n16k, end=None):
        for i in range(4): a(f"v_mov_b32 v{t0+i}, 0")
        a(f"v_add_u32 v{t0+4}, {beg}, v{tid16}")
        for k in range(n16k):
            if k==3: a(f"v_add_u32 v{t0+4}, {3*16384}, v{t0+4}")
            lim = end is not None and k==n16k-1 and beg+n16k*16384>end
            if lim:
                a(f"v_cmp_gt_u32 vcc, {(end-beg-(n16k-1)*16384)//16}, v{V_TID}")
                a("s_and_saveexec_b64 s[70:71], vcc")
            a(f"ds_write_b128 v{t0+4}, {vr(t0)} offset:{(k%3)*16384}")
            if lim: a("s_mov_b64 exec, s[70:71]")

    sbn=[0]
    def sb_arrive(idx, tmp):
        a(f"v_mov_b32 v{tmp}, {L_SB+4*idx}")
        a(f"v_mov_b32 v{tmp+1}, 1")
        a("s_mov_b64 exec, 1")
        a(f"ds_add_u32 v{tmp}, v{tmp+1}")
        a("s_mov_b64 exec, -1")
    def sb_wait(idx, tmp, target=8):
        sbn[0]+=1; l=f"K2_SBW{sbn[0]}"
        a(f"v_mov_b32 v{tmp}, {L_SB+4*idx}")
        a.label(l)
        a(f"ds_read_b32 v{tmp+1}, v{tmp}")
        a("s_waitcnt lgkmcnt(0)")
        a(f"v_readfirstlane_b32 s69, v{tmp+1}")
        a(f"s_cmp_ge_u32 s69, {target}")
        a(f"s_cbranch_scc1 {l}X")
        a("s_sleep 1")
        a(f"s_branch {l}")
        a.label(l+"X")
    RECS=((100,S_V0),(104,S_V1),(108,S_V2),(112,S_V3))
    DL=lambda k: 60+k; CA=lambda k: 64+k; RK=lambda k: 68+k; RL=lambda k: 72+k
    def load_recs(all4):
        a(f"v_lshlrev_b32 v121, 4, v{V_TID}")
        a(f"v_add_u32 v120, 8192, v121")
        a(f"buffer_load_dwordx4 v[100:103], v121, s[40:43], s{S_RB0} offen")
        a(f"buffer_load_dwordx4 v[104:107], v120, s[40:43], s{S_RB0} offen")
        if all4:
            a(f"buffer_load_dwordx4 v[108:111], v121, s[40:43], s{S_RB1} offen")
            a(f"buffer_load_dwordx4 v[112:115], v120, s[40:43], s{S_RB1} offen")
    def zero512(beg, end, t0):
        n=(end-beg+8191)//8192
        for i in range(4): a(f"v_mov_b32 v{t0+i}, 0")
        a(f"v_add_u32 v{t0+4}, {beg}, v121")
        for k in range(n):
            if k and k%7==0: a(f"v_add_u32 v{t0+4}, {7*8192}, v{t0+4}")
            lim = (k==n-1 and beg+n*8192>end)
            if lim:
                a(f"v_cmp_gt_u32 vcc, {(end-beg-(n-1)*8192)//16}, v{V_TID}")
                a("s_and_saveexec_b64 s[70:71], vcc")
            a(f"ds_write_b128 v{t0+4}, {vr(t0)} offset:{(k%7)*8192}")
            if lim: a("s_mov_b64 exec, s[70:71]")
    def pad512(t0):
        a(f"v_mov_b32 v{t0}, {PADOFF}")
        a(f"v_mov_b32 v{t0+1}, {15<<5}")
        a(f"v_mov_b32 v{t0+2}, {PADOFF}")
        a(f"v_mov_b32 v{t0+3}, {15<<5}")
        a(f"v_add_u32 v{t0+4}, {L_EI}, v121")
        a(f"v_cmp_gt_u32 vcc, {TCAP*16}, v{V_TID}")
        a("s_and_saveexec_b64 s[70:71], vcc")
        a(f"ds_write_b128 v{t0+4}, {vr(t0)}")
        a("s_mov_b64 exec, s[70:71]")
        a(f"v_mov_b32 v{t0+1}, {PADOFF}")
        a(f"v_mov_b32 v{t0+3}, {PADOFF}")
        a(f"v_add_u32 v{t0+4}, {L_OFF}, v121")
        a(f"v_cmp_gt_u32 vcc, {TCAP*8}, v{V_TID}")
        a("s_and_saveexec_b64 s[70:71], vcc")
        a(f"ds_write_b128 v{t0+4}, {vr(t0)}")
        a("s_mov_b64 exec, s[70:71]")
    assert TCAP*16<=512
    def small_loads():
        a(f"s_lshl_b32 s55, s{S_W}, 11")
        a(f"s_add_u32 s55, s55, {IMG_W3}")
        a(f"buffer_load_dwordx4 {vr(W3L)}, v{V_TMP2}, s[40:43], s55 offen")
        a(f"buffer_load_dwordx4 {vr(W3H)}, v{V_TMP2}, s[40:43], s55 offen offset:1024")
        a(f"s_mov_b32 s13, {512*512}")
        a(f"buffer_load_dword v{V_WD}, v{V_LOFF}, s[48:51], s13 offen")
    a(f"s_cmp_ge_u32 s2, {NB}")
    a("s_cbranch_scc1 K2_END")
    if dbg: a("s_memrealtime s[26:27]")
    a("s_load_dwordx2 s[24:25], s[0:1], 80")
    a("s_load_dwordx16 s[4:19], s[0:1], 0")
    a("s_load_dwordx4 s[20:23], s[0:1], 64")
    a(f"v_mov_b32 v{V_TID}, v0")
    a(f"v_and_b32 v{V_LANE}, 63, v0")
    a("v_lshrrev_b32 v120, 6, v0")
    a(f"v_readfirstlane_b32 s{S_WAVE}, v120")
    a(f"s_lshl_b32 s{S_RB0}, s2, 15")
    a(f"s_add_u32 s{S_RB0}, s{S_RB0}, {WS_CELL}")
    a(f"s_add_u32 s{S_RB1}, s{S_RB0}, 16384")
    a(f"s_and_b32 s{S_W}, s{S_WAVE}, 3")
    a(f"s_lshr_b32 s{S_SUB}, s{S_WAVE}, 2")
    a(f"v_and_b32 v{V_TA}, 31, v{V_LANE}")
    a(f"v_lshrrev_b32 v{V_TB}, 5, v{V_LANE}")
    a(f"v_lshlrev_b32 v{V_TMP2}, 4, v{V_LANE}")
    a(f"v_lshlrev_b32 v{V_HH16}, 4, v{V_TB}")
    a(f"s_lshl_b32 s55, s{S_W}, 7")
    a(f"v_lshl_add_u32 v{V_LOFF}, v{V_TA}, 2, s55")
    a(f"v_lshlrev_b32 v{V_S2A}, 10, v{V_TB}")
    a(f"v_lshl_add_u32 v{V_S2A}, v{V_TA}, 4, v{V_S2A}")
    a(f"v_add_u32 v{V_S2A}, {L_S2}, v{V_S2A}")
    a(f"v_bfe_u32 v121, v{V_TA}, 2, 1")
    a(f"v_lshlrev_b32 v{V_EIA}, 4, v121")
    a(f"v_and_b32 v121, 3, v{V_TA}")
    a(f"v_add_u32 v{V_EIA}, v{V_EIA}, v121")
    a(f"v_lshrrev_b32 v121, 3, v{V_TA}")
    a(f"v_lshl_add_u32 v{V_EIA}, v121, 2, v{V_EIA}")
    a(f"v_lshlrev_b32 v{V_EIA}, 3, v{V_EIA}")
    a(f"v_add_u32 v{V_EIA}, {L_EI}, v{V_EIA}")
    a("s_lshl_b32 s55, s2, 8")
    a(f"s_add_u32 s55, s55, {WS_HDR}")
    a(f"v_lshrrev_b32 v120, 4, v{V_TID}")
    a("v_lshlrev_b32 v120, 2, v120")
    a(f"v_lshlrev_b32 v8, 2, v{V_LANE}")
    a(f"v_add_u32 v8, {L_SB}, v8")
    a("v_mov_b32 v9, 0")
    a("s_mov_b64 exec, 0xffff")
    a("ds_write_b32 v8, v9")
    a("s_mov_b64 exec, -1")
    a("s_waitcnt lgkmcnt(0)")
    a("s_barrier")
    stamp(0)
    rstamp(14)
    srd(a,40,24,WS_END)
    srd(a,32,8,E*32)
    srd(a,36,24,WS_B_SIZE)
    srd(a,44,20,2590000*2)
    a(f"s_mov_b32 s{S_FIRST}, 1")
    a(f"s_mov_b64 s[{S_OVM}:{S_OVM+1}], 0")
    a(f"s_mov_b32 s{S_OCH}, 0")
    a(f"s_mov_b32 s{S_OCN}, 0")
    a(f"s_mov_b32 s{S_OP}, 0")
    a(f"s_mov_b32 s{S_PRE}, 0")
    a(f"s_cmp_ge_u32 s{S_WAVE}, 8")
    a("s_cbranch_scc1 K2_GW")
    a("buffer_load_dword v116, v120, s[40:43], s55 offen")
    a("buffer_load_dword v117, v120, s[40:43], s55 offen offset:128")
    load_recs(False)
    srd(a,48,14,529*512)
    a("s_mov_b32 s14, 0")
    zero512(ZERO_BEG, ZERO_END, 24)
    a("s_waitcnt vmcnt(2)")
    a(f"v_and_b32 v119, 15, v{V_TID}")
    a(f"v_cmp_lt_u32 s[{S_V0}:{S_V0+1}], v119, v116")
    a(f"v_cmp_lt_u32 s[{S_V1}:{S_V1+1}], v119, v117")
    a("v_add_u32 v119, 16, v119")
    a(f"v_cmp_lt_u32 s[{S_V2}:{S_V2+1}], v119, v116")
    a(f"v_cmp_lt_u32 s[{S_V3}:{S_V3+1}], v119, v117")
    a(f"s_mov_b64 exec, s[{S_V2}:{S_V2+1}]")
    a("s_cbranch_execz K2_NOA1")
    a(f"buffer_load_dwordx4 v[108:111], v121, s[40:43], s{S_RB1} offen")
    a.label("K2_NOA1")
    a(f"s_mov_b64 exec, s[{S_V3}:{S_V3+1}]")
    a("s_cbranch_execz K2_NOB1")
    a(f"buffer_load_dwordx4 v[112:115], v120, s[40:43], s{S_RB1} offen")
    a.label("K2_NOB1")
    a("s_mov_b64 exec, -1")
    pad512(24)
    a(f"v_lshrrev_b32 v92, 1, v{V_TID}")
    a(f"v_and_b32 v93, 1, v{V_TID}")
    a("v_lshlrev_b32 v93, 3, v93")
    a("v_sub_u32 v92, v92, v93")
    a("v_lshrrev_b32 v93, 1, v92")
    a("v_and_b32 v94, 1, v92")
    a("v_lshlrev_b32 v94, 4, v94")
    a("v_mov_b32 v95, 0x3f80")
    a("v_lshlrev_b32 v95, v94, v95")
    for q in range(4):
        a(f"v_cmp_eq_u32 vcc, {q}, v93")
        a(f"v_cndmask_b32 v{24+q}, 0, v95, vcc")
    a(f"v_cmp_eq_u32 vcc, 31, v{V_TID}")
    a("v_cndmask_b32 v27, v27, 0, vcc")
    a(f"v_cmp_gt_u32 vcc, 32, v{V_TID}")
    a("s_and_saveexec_b64 s[70:71], vcc")
    a("ds_write_b128 v121, v[24:27]")
    a("s_mov_b64 exec, s[70:71]")
    if 'sel' in abl:
        a(f"v_lshrrev_b32 v92, 6, v{V_TID}")
        a(f"v_and_b32 v93, 31, v{V_TID}")
        a(f"v_bfe_u32 v94, v{V_TID}, 5, 1")
        a("v_lshlrev_b32 v92, 3, v92")
        a("v_lshl_add_u32 v92, v94, 2, v92")
        a("v_sub_u32 v93, v93, v92")
        a("v_mov_b32 v95, 0x3f80")
        for q in range(4):
            a(f"v_cmp_eq_u32 vcc, {q}, v93")
            a(f"v_cndmask_b32 v{24+q}, 0, v95, vcc")
        a(f"v_add_u32 v92, {L_SEL}, v121")
        a(f"v_cmp_gt_u32 vcc, 256, v{V_TID}")
        a("s_and_saveexec_b64 s[70:71], vcc")
        a("ds_write_b128 v92, v[24:27]")
        a("s_mov_b64 exec, s[70:71]")
    stamp(11)
    a("s_waitcnt lgkmcnt(0)")
    sb_arrive(0, 36)
    sb_wait(0, 36)
    a("s_waitcnt vmcnt(0)")
    a("s_branch K2_B1")
    a.label("K2_GW")
    srd(a,28,4,N*512)
    srd(a,48,14,529*512)
    a(f"s_sub_u32 s67, s{S_WAVE}, 8")
    a("s_mul_i32 s55, s67, 5")
    a("s_mul_i32 s14, s2, 40")
    for j in range(3):
        a(f"s_add_u32 s68, s55, {2*j}")
        a(f"v_add_u32 v8, s68, v{V_TB}")
        a("v_and_b32 v9, 15, v8")
        a(f"v_xor_b32 v9, v9, v{V_TA}")
        a("v_lshlrev_b32 v9, 4, v9")
        a(f"v_lshl_or_b32 v9, v{V_TB}, 9, v9")
        a("s_add_u32 s56, s14, s68")
        a("s_lshl_b32 s56, s56, 9")
        a("s_lshl_b32 s57, s68, 9")
        a(f"s_add_u32 m0, s57, {L_HT}")
        if j==2: a("s_mov_b64 exec, 0xffffffff")
        a("buffer_load_dwordx4 v9, s[28:31], s56 offen lds")
        if j==2: a("s_mov_b64 exec, -1")
    srd(a,72,16,512)
    a(f"v_subrev_u32 v120, 512, v{V_TID}")
    a("v_and_b32 v16, 0xc0, v120")
    a(f"v_lshl_add_u32 v16, v{V_TA}, 1, v16")
    a("v_bfe_u32 v17, v120, 5, 1")
    a("v_add_u32 v16, v16, v17")
    a("v_lshlrev_b32 v16, 1, v16")
    a("v_mov_b32 v18, 0x7ffffff0")
    a("v_cmp_gt_u32 vcc, 256, v120")
    a("v_cndmask_b32 v16, v18, v16, vcc")
    a(f"buffer_load_ushort v{V_PP}, v16, s[72:75], 0 offen")
    a("v_lshrrev_b32 v19, 6, v120")
    a("v_lshlrev_b32 v19, 7, v19")
    a("v_lshl_add_u32 v19, v17, 6, v19")
    a(f"v_lshrrev_b32 v18, 4, v{V_TA}")
    a("v_lshl_add_u32 v19, v18, 5, v19")
    a(f"v_bfe_u32 v18, v{V_TA}, 2, 1")
    a("v_lshl_add_u32 v19, v18, 4, v19")
    a(f"v_and_b32 v18, 3, v{V_TA}")
    a("v_lshl_add_u32 v19, v18, 1, v19")
    a(f"v_bfe_u32 v18, v{V_TA}, 3, 1")
    a("v_lshl_add_u32 v19, v18, 3, v19")
    a(f"v_add_u32 v{V_PP2}, {L_WXF}, v19")
    small_loads()
    a("s_mov_b32 s14, 0")
    WF=56
    a(f"s_lshl_b32 s13, s67, 14")
    a(f"s_add_u32 s13, s13, {IMG_W1}")
    for c in range(2):
        for ks in range(8):
            if ks==4 or (c==1 and ks==0): a("s_add_u32 s13, s13, 4096")
            a(f"buffer_load_dwordx4 {vr(WF+32*c+4*ks)}, v{V_TMP2}, s[40:43], s13 offen offset:{(ks%4)*1024}")
    stamp(11)
    a("s_waitcnt vmcnt(20)")
    sb_arrive(1, 16)
    sb_wait(1, 16)
    stamp(1)
    a(f"v_and_b32 v{V_TA}, 15, v{V_LANE}")
    a(f"v_lshrrev_b32 v{V_TB}, 4, v{V_LANE}")
    a(f"v_xor_b32 v120, v{V_TA}, v{V_TB}")
    a("v_lshlrev_b32 v120, 4, v120")
    a(f"v_lshl_add_u32 v120, v{V_TA}, 9, v120")
    a(f"v_add_u32 v120, {L_HT}, v120")
    AC=16; AF=28
    def rdh(ks):
        a(f"v_xor_b32 v121, {ks<<6}, v120")
        for rt in range(3): a(f"ds_read_b128 {vr(AF+12*(ks%2)+4*rt)}, v121 offset:{rt*8192}")
    a(f"s_sub_u32 s67, s{S_WAVE}, 8")
    a("s_lshl_b32 s55, s67, 5")
    a(f"v_add_u32 v52, s55, v{V_TA}")
    a("v_mul_u32_u24 v52, 80, v52")
    a(f"v_lshl_add_u32 v52, v{V_TB}, 3, v52")
    a(f"v_add_u32 v52, {L_AT}, v52")
    a(f"s_mov_b32 s55, {f2u(-LOG2E)}")
    for c in range(2):
        rdh(0)
        a(f"s_waitcnt vmcnt({8 if c==0 else 0})")
        for ks in range(8):
            if ks<7:
                rdh(ks+1); a("s_waitcnt lgkmcnt(3)")
            else: a("s_waitcnt lgkmcnt(0)")
            for rt in range(3):
                acc=AC+4*rt
                cc='0' if ks==0 else vr(acc)
                a(f"v_mfma_f32_16x16x32_bf16 {vr(acc)}, {vr(AF+12*(ks%2)+4*rt)}, {vr(WF+32*c+4*ks)}, {cc}")
        for rt in range(3):
            acc=AC+4*rt
            for r in range(4): a(f"v_mul_f32 v{acc+r}, s55, v{acc+r}")
            o=WF+32*c+2*rt
            a(f"v_cvt_pk_bf16_f32 v{o}, v{acc}, v{acc+1}")
            a(f"v_cvt_pk_bf16_f32 v{o+1}, v{acc+2}, v{acc+3}")
            if rt==2: a("s_mov_b64 exec, 0xffffffff")
            a(f"ds_write_b64 v52, v[{o}:{o+1}] offset:{rt*32+c*16*80}")
            if rt==2: a("s_mov_b64 exec, -1")
    a("s_waitcnt vmcnt(0)")
    a(f"v_subrev_u32 v120, 512, v{V_TID}")
    a("v_cmp_gt_u32 vcc, 256, v120")
    a("s_and_saveexec_b64 s[70:71], vcc")
    a(f"ds_write_b16 v{V_PP2}, v{V_PP}")
    a("s_mov_b64 exec, s[70:71]")
    stamp(2)
    sb_wait(2, 36)
    stamp(3)
    a("s_branch K2_SCAN")
    a.label("K2_B1")
    stamp(1)
    a("v_max_u32 v118, v116, v117")
    a("v_cmp_lt_u32 vcc, 32, v118")
    a("s_and_saveexec_b64 s[70:71], vcc")
    a("s_cbranch_execz K2_NOOV2")
    for hv,add in ((116,0),(117,32)):
        a(f"v_lshrrev_b32 v119, 4, v{V_TID}")
        if add: a(f"v_add_u32 v119, {add}, v119")
        a(f"v_cmp_lt_u32 vcc, 32, v{hv}")
        a("v_cndmask_b32 v120, 0, 1, vcc")
        a("v_mov_b32 v121, 0")
        a("v_lshlrev_b64 v[120:121], v119, v[120:121]")
        a(f"v_mov_b32 v119, {L_OVM}")
        a("ds_or_b64 v119, v[120:121]")
    a.label("K2_NOOV2")
    a("s_mov_b64 exec, s[70:71]")
    stamp(2)
    a.label("K2_BATCH")
    a(f"s_cmp_ge_u32 s{S_WAVE}, 8")
    a("s_cbranch_scc1 K2_RANKED")
    a("v_mov_b32 v119, 1")
    for k,(rec,val) in enumerate(RECS):
        a(f"v_bfe_u32 v{DL(k)}, v{rec}, 24, 6")
        a(f"v_lshlrev_b32 v{CA(k)}, 2, v{DL(k)}")
        a(f"v_add_u32 v118, {L_CNT}, v{CA(k)}")
        a(f"s_mov_b64 exec, s[{val}:{val+1}]")
        a(f"ds_add_rtn_u32 v{RK(k)}, v118, v119")
        a("s_mov_b64 exec, -1")
    a(f"s_cmp_eq_u32 s{S_FIRST}, 0")
    a("s_cbranch_scc1 K2_RANKED")
    small_loads()
    a("s_waitcnt lgkmcnt(0)")
    sb_arrive(2, 36)
    sb_wait(2, 36)
    stamp(3)
    a("s_branch K2_SCAN")
    a.label("K2_RANKED")
    a("s_waitcnt lgkmcnt(0)")
    a("s_barrier")
    a.label("K2_SCAN")
    a(f"v_lshlrev_b32 v36, 2, v{V_LANE}")
    a(f"v_add_u32 v36, {L_CNT}, v36")
    a("ds_read_b32 v37, v36")
    a(f"v_mov_b32 v38, {L_OVM}")
    a("ds_read_b64 v[38:39], v38")
    a(f"v_cmp_gt_u32 vcc, 40, v{V_LANE}")
    a("s_waitcnt lgkmcnt(0)")
    a("v_cndmask_b32 v37, 0, v37, vcc")
    a("v_mov_b32 v40, v37")
    for sh in (1,2,4,8):
        a(f"v_add_u32_dpp v40, v40, v40 row_shr:{sh} row_mask:0xf bank_mask:0xf bound_ctrl:0")
    a("v_add_u32_dpp v40, v40, v40 row_bcast:15 row_mask:0xa bank_mask:0xf")
    a("v_add_u32_dpp v40, v40, v40 row_bcast:31 row_mask:0xc bank_mask:0xf")
    a("v_sub_u32 v41, v40, v37")
    a(f"s_cmp_eq_u32 s{S_FIRST}, 0")
    a("s_cbranch_scc1 K2_NOMASK")
    a(f"v_readfirstlane_b32 s{S_OVM}, v38")
    a(f"v_readfirstlane_b32 s{S_OVM+1}, v39")
    a.label("K2_NOMASK")
    for g in range(4): a(f"v_readlane_b32 s{S_G1+g}, v41, {8*(g+1)}")
    a(f"v_readlane_b32 s{S_N}, v40, 39")
    a("v_and_b32 v42, -32, v41")
    a(f"v_cmp_le_u32 vcc, s{S_G1}, v42")
    a(f"v_cndmask_b32 v43, 0, 1, vcc")
    for g in range(1,4):
        a(f"v_cmp_le_u32 vcc, s{S_G1+g}, v42")
        a(f"v_addc_co_u32 v43, vcc, 0, v43, vcc")
    a("v_lshlrev_b32 v43, 3, v43")
    a(f"v_sub_u32 v43, v{V_LANE}, v43")
    a("v_cmp_lt_i32 vcc, 14, v43")
    a("v_cmp_lt_u32 s[70:71], 0, v37")
    a("s_and_b64 vcc, vcc, s[70:71]")
    a("s_cbranch_vccz K2_DENSE")
    AG=[None,97,98,99,100]
    a(f"s_add_u32 s97, s{S_G1}, 31")
    a("s_and_b32 s97, s97, -32")
    for g in range(2,5):
        a(f"s_sub_u32 s{AG[g]}, s{S_G1+g-1}, s{S_G1+g-2}")
        a(f"s_add_u32 s{AG[g]}, s{AG[g]}, 31")
        a(f"s_and_b32 s{AG[g]}, s{AG[g]}, -32")
        a(f"s_add_u32 s{AG[g]}, s{AG[g]}, s{AG[g-1]}")
    a(f"s_sub_u32 s{S_N}, s{S_N}, s{S_G1+3}")
    a(f"s_add_u32 s{S_N}, s{S_N}, s100")
    for g in range(1,5):
        a(f"s_sub_u32 s69, s{AG[g]}, s{S_G1+g-1}")
        a(f"v_mov_b32 v42, s69")
        a(f"v_cmp_le_u32 vcc, {8*g}, v{V_LANE}")
        if g==1: a(f"v_cndmask_b32 v43, 0, v42, vcc")
        else:    a(f"v_cndmask_b32 v43, v43, v42, vcc")
    a("v_add_u32 v41, v41, v43")
    a(f"v_and_b32 v43, 7, v{V_LANE}")
    for g in range(1,5): a(f"s_mov_b32 s{S_G1+g-1}, s{AG[g]}")
    a.label("K2_DENSE")
    a(f"s_add_u32 s{S_T}, s{S_N}, 31")
    a(f"s_lshr_b32 s{S_T}, s{S_T}, 5")
    a(f"s_mov_b32 s{S_RB}, 0")
    a(f"s_cmp_ge_u32 s{S_WAVE}, 8")
    a("s_cbranch_scc1 K2_GW2")
    a("v_and_b32 v43, 15, v43")
    a("v_lshl_or_b32 v41, v43, 16, v41")
    for k in range(4): a(f"ds_bpermute_b32 v{24+k}, v{CA(k)}, v41")
    a("s_waitcnt lgkmcnt(0)")
    for k in range(4):
        a(f"v_and_b32 v36, 0xffff, v{24+k}")
        a(f"v_add_u32 v{RK(k)}, v36, v{RK(k)}")
        a(f"v_xor_b32 v36, v36, v{RK(k)}")
        a(f"v_lshrrev_b32 v{RL(k)}, 16, v{24+k}")
        a(f"v_and_b32 v37, 7, v{DL(k)}")
        a(f"v_cmp_gt_u32 vcc, 32, v36")
        a(f"v_cndmask_b32 v{RL(k)}, v37, v{RL(k)}, vcc")
        a(f"v_and_b32 v{RK(k)}, 0xfff, v{RK(k)}")
    for pp,(k0,k1_) in ((V_PP,(0,1)),(V_PP2,(2,3))):
        a(f"v_lshl_or_b32 v{pp}, v{RL(k0)}, 12, v{RK(k0)}")
        a(f"v_lshl_or_b32 v36, v{RL(k1_)}, 12, v{RK(k1_)}")
        a(f"v_lshl_or_b32 v{pp}, v36, 16, v{pp}")
    stamp(4)
    a(f"s_cmp_lg_u32 s{S_FIRST}, 0")
    a("s_cbranch_scc1 K2_CLEAN")
    a("s_branch K2_ROUND")
    a.label("K2_GW2")
    a(f"s_cmp_eq_u32 s{S_FIRST}, 0")
    a("s_cbranch_scc1 K2_ROUND")
    a("s_branch K2_WDONE")
    a.label("K2_ROUND")
    lane_tid()
    a(f"s_cmp_ge_u32 s{S_WAVE}, 8")
    a("s_cbranch_scc1 K2_RND2")
    load_recs(True)
    zero512(L_S2, L_S2+(TCAP+4)*2048, 24)
    pad512(24)
    a("s_waitcnt vmcnt(0) lgkmcnt(0)")
    for k,(rec,val) in enumerate(RECS):
        pp=V_PP if k<2 else V_PP2
        sh=16*(k%2)
        a(f"v_bfe_u32 v{DL(k)}, v{rec}, 24, 6")
        a(f"v_bfe_u32 v{RK(k)}, v{pp}, {sh}, 12")
        a(f"v_bfe_u32 v{RL(k)}, v{pp}, {sh+12}, 4")
    a.label("K2_RND2")
    a("s_barrier")
    a(f"s_cmp_ge_u32 s{S_WAVE}, 8")
    a("s_cbranch_scc1 K2_WDONE")
    def tile_range():
        a(f"s_sub_u32 s55, s{S_T}, s{S_RB}")
        a(f"s_min_u32 s55, s55, {TCAP}")
        a(f"s_add_u32 s{S_PER}, s55, 3")
        a(f"s_lshr_b32 s{S_PER}, s{S_PER}, 2")
        a(f"s_mul_i32 s{S_TL}, s{S_PER}, s{S_SUB}")
        a(f"s_add_u32 s{S_TE}, s{S_TL}, s{S_PER}")
        a(f"s_min_u32 s{S_TE}, s{S_TE}, s55")
        a(f"s_min_u32 s{S_TL}, s{S_TL}, s55")
        a(f"s_add_u32 s55, s{S_RB}, {TCAP}")
        a(f"s_cmp_ge_u32 s55, s{S_T}")
        a(f"s_cselect_b32 s{S_PRE}, 1, 0")
        a(f"s_cmp_eq_u64 s[{S_OVM}:{S_OVM+1}], 0")
        a(f"s_cselect_b32 s{S_PRE}, s{S_PRE}, 0")
        a(f"s_lshl_b32 s55, s{S_OCH}, 11")
        a(f"s_cmp_ge_u32 s55, s{S_OCN}")
        a(f"s_cselect_b32 s{S_PRE}, s{S_PRE}, 0")
    def issue_loads(tll):
        a(f"s_lshl_b32 s67, s{tll}, 7")
        a(f"s_add_u32 s68, s67, {L_OFF}")
        a(f"v_lshl_add_u32 v{V_TA}, v{V_HH16}, 2, s68")
        for q in range(4): a(f"ds_read_b128 {vr(G+4*q)}, v{V_TA} offset:{16*q}")
        a(f"s_lshl_b32 s68, s{tll}, 8")
        a(f"v_add_u32 v{V_TB}, s68, v{V_EIA}")
        a(f"ds_read_b64 v[{V_TA}:{V_TB}], v{V_TB}")
    def issue_loads2():
        for q in range(8):
            a(f"v_pk_add_f32 v[{G+2*q}:{G+2*q+1}], v[{G+2*q}:{G+2*q+1}], v[{V_LOFF}:{V_LOFF+1}] op_sel_hi:[1,0]")
        a(f"v_add_u32 v{V_TA}, v{V_TA}, v{V_HH16}")
        a(f"v_mov_b32 v{V_INF}, v{V_TB}")
        if 'noea' not in abl: a(f"buffer_load_dwordx4 {vr(X1)}, v{V_TA}, s[32:35], 0 offen")
        if 'noload' not in abl:
            for r in range(16): a(f"buffer_load_dword v{G+r}, v{G+r}, s[36:39], 0 offen")
    a.label("K2_CLEAN")
    a("s_mov_b32 s67, 0x7ffe00")
    a("s_mov_b32 s68, 0xffff0000")
    a(f"s_lshl_b32 s69, s{S_RB}, 5")
    def write_rec(rec, dl, pos, rel, valid, tag):
        w0,w1_,W2,W3=rec,rec+1,rec+2,rec+3
        Pp,AD,A2,VAL,INF,SL,ONE,DLT=24,25,26,28,29,30,31,32
        a(f"v_subrev_u32 v{Pp}, s69, v{pos}")
        a(f"v_cmp_gt_u32 vcc, {TCAP*32}, v{Pp}")
        a(f"s_and_b64 vcc, vcc, s[{valid}:{valid+1}]")
        a("s_and_saveexec_b64 s[70:71], vcc")
        a(f"s_cbranch_execz K2_WR{tag}")
        a(f"v_lshlrev_b32 v{AD}, 2, v{Pp}")
        a(f"v_and_b32 v{A2}, s67, v{w0}")
        a(f"v_add_u32 v{AD}, {L_OFF}, v{AD}")
        a(f"ds_write_b32 v{AD}, v{A2}")
        a(f"v_lshlrev_b32 v{A2}, 5, v{rel}")
        a(f"v_and_or_b32 v{INF}, v{W3}, s68, v{A2}")
        a(f"v_mov_b32 v{VAL}, v{w1_}")
        a(f"v_lshlrev_b32 v{AD}, 3, v{Pp}")
        a(f"v_add_u32 v{AD}, {L_EI}, v{AD}")
        a(f"ds_write_b64 v{AD}, v[{VAL}:{INF}]")
        a(f"v_lshrrev_b32 v{AD}, 3, v{Pp}")
        a(f"v_lshlrev_b32 v{AD}, 9, v{AD}")
        a(f"v_and_b32 v{A2}, 7, v{Pp}")
        a(f"v_lshl_add_u32 v{AD}, v{A2}, 1, v{AD}")
        a(f"v_and_b32 v{SL}, 7, v{rel}")
        a(f"v_lshl_add_u32 v{AD}, v{SL}, 6, v{AD}")
        a(f"v_lshrrev_b32 v{DLT}, 3, v{dl}")
        a(f"v_lshrrev_b32 v{A2}, 5, v{Pp}")
        a(f"v_sub_u32 v{DLT}, v{DLT}, v{A2}")
        a(f"v_add_u32 v{DLT}, {TCAP-1}, v{DLT}")
        a(f"v_lshlrev_b32 v{DLT}, 11, v{DLT}")
        a(f"v_cmp_lt_u32 vcc, 7, v{rel}")
        a(f"v_cndmask_b32 v{DLT}, 0, v{DLT}, vcc")
        a(f"v_add_u32 v{AD}, v{AD}, v{DLT}")
        a(f"v_mov_b32 v{ONE}, 0x3f80")
        a(f"ds_write_b16 v{AD}, v{ONE} offset:{L_S2}")
        a(f"ds_write_b16 v{AD}, v{W2} offset:{L_S2+16}")
        a(f"ds_write_b16_d16_hi v{AD}, v{W2} offset:{L_S2+32}")
        a(f"ds_write_b16 v{AD}, v{W3} offset:{L_S2+48}")
        a.label(f"K2_WR{tag}")
        a("s_mov_b64 exec, s[70:71]")
    for k,(rec,val) in enumerate(RECS): write_rec(rec,DL(k),RK(k),RL(k),val,"ABCD"[k])
    if 'noearly' not in abl:
        a(f"s_cmp_eq_u32 s{S_FIRST}, 0")
        a("s_cbranch_scc1 K2_WDONE")
        a("s_waitcnt lgkmcnt(0)")
        sb_arrive(3, 36)
        sb_wait(3, 36)
        tile_range()
        a(f"s_cmp_ge_u32 s{S_TL}, s{S_TE}")
        a("s_cbranch_scc1 K2_WDONE")
        a("s_waitcnt vmcnt(0)")
        issue_loads(S_TL)
        a("s_waitcnt lgkmcnt(0)")
        issue_loads2()
        a("s_mov_b32 s14, 1")
        a(f"s_mov_b32 s55, {f2u(-LOG2E)}")
        a(f"v_lshlrev_b32 v36, 16, v{V_WD}")
        a(f"v_and_b32 v37, 0xffff0000, v{V_WD}")
        a("v_mul_f32 v36, s55, v36")
        a("v_mul_f32 v37, s55, v37")
        a(f"v_cvt_pk_bf16_f32 v{V_WD}, v36, v37")
        a("s_branch K2_NOWX")
    a.label("K2_WDONE")
    a(f"s_cmp_eq_u32 s{S_FIRST}, 0")
    a("s_cbranch_scc1 K2_NOWX")
    a("s_waitcnt vmcnt(0)")
    a(f"s_mov_b32 s55, {f2u(-LOG2E)}")
    a(f"v_lshlrev_b32 v36, 16, v{V_WD}")
    a(f"v_and_b32 v37, 0xffff0000, v{V_WD}")
    a("v_mul_f32 v36, s55, v36")
    a("v_mul_f32 v37, s55, v37")
    a(f"v_cvt_pk_bf16_f32 v{V_WD}, v36, v37")
    a.label("K2_NOWX")
    a("s_waitcnt lgkmcnt(0)")
    a("s_barrier")
    stamp(5)
    tile_range()
    F1=[G,G+4,G+8,G+12,W3L,W3H,ATL,ATH]
    F2=[L+4*i for i in range(8)]
    def load_f(regs, img, l16):
        a(f"s_lshl_b32 s67, s{S_WAVE}, 13")
        a(f"s_add_u32 s67, s67, {img}")
        for ks in range(8):
            if ks==4: a("s_add_u32 s67, s67, 4096")
            a(f"buffer_load_dwordx4 {vr(regs[ks])}, v{l16}, s[40:43], s67 offen offset:{(ks%4)*1024}")
    a(f"s_mov_b32 s{S_CUR}, -1")
    a(f"s_mov_b32 s{S_ATG}, -1")
    a(f"s_mov_b32 s{S_CONT}, -1")
    a(f"s_mov_b32 s15, 0")
    a(f"s_cmp_ge_u32 s{S_TL}, s{S_TE}")
    a("s_cbranch_scc1 K2_LOOPEND")
    a(f"s_mov_b32 s13, s{S_TL}")
    a("s_setprio 3")
    a("s_cmp_eq_u32 s14, 1")
    a("s_cbranch_scc1 K2_HAVE1")
    issue_loads(S_TL)
    a("s_waitcnt lgkmcnt(0)")
    issue_loads2()
    a.label("K2_HAVE1")
    a("s_mov_b32 s14, 0")
    stamp(6)
    a(f"s_add_u32 s55, s{S_TL}, s{S_RB}")
    a("s_lshl_b32 s55, s55, 5")
    a("s_mov_b32 s67, 0")
    a("s_mov_b32 s68, 0")
    for g in range(4):
        a(f"s_cmp_ge_u32 s55, s{S_G1+g}")
        a(f"s_cselect_b32 s68, s{S_G1+g}, s68")
        a(f"s_addc_u32 s67, s67, 0")
    a("s_cmp_lt_u32 s68, s55")
    a(f"s_cselect_b32 s{S_CONT}, s67, -1")
    a(f"s_cmp_eq_u32 s{S_SUB}, 0")
    a(f"s_cselect_b32 s{S_CONT}, -1, s{S_CONT}")
    fl=[0]
    def flush():
        fl[0]+=1; tg=f"F{fl[0]}"
        a(f"s_lshl_b32 s67, s{S_W}, 7")
        a(f"s_add_u32 s67, s67, {L_WXF}")
        a(f"v_add_u32 v{V_TA}, s67, v{V_HH16}")
        WX=[L+8,L+12,H+8,H+12]
        for i in range(4): a(f"ds_read_b128 {vr(WX[i])}, v{V_TA} offset:{32*i}")
        a(f"s_lshl_b32 s67, s{S_CUR}, 3")
        a(f"s_mov_b32 s68, s{S_CUR}")
        a(f"s_cmp_eq_u32 s{S_CUR}, s{S_CONT}")
        a(f"s_cbranch_scc0 K2_{tg}A")
        a(f"s_cmp_eq_u32 s{S_FIRST}, 0")
        a(f"s_cbranch_scc1 K2_{tg}A")
        a(f"s_lshl_b32 s67, s{S_SUB}, 3")
        a("s_add_u32 s67, s67, 32")
        a(f"s_add_u32 s68, s{S_SUB}, 4")
        a.label(f"K2_{tg}A")
        a(f"s_mul_i32 s67, s67, {MI_STR}")
        a(f"s_lshl_b32 s69, s{S_W}, 7")
        a("s_add_u32 s67, s67, s69")
        a(f"s_add_u32 s67, s67, {L_MI}")
        a(f"v_bfe_u32 v{V_TA}, v{V_LOFF}, 4, 3")
        a(f"v_mul_u32_u24 v{V_TA}, {MI_STR}, v{V_TA}")
        a(f"v_lshrrev_b32 v{T}, 1, v{V_HH16}")
        a(f"v_add3_u32 v{V_TA}, v{V_TA}, v{T}, s67")
        for q in range(8): a(f"v_cvt_pk_bf16_f32 v{D2L+q}, v{D2L+2*q}, v{D2L+2*q+1}")
        for q in range(7,-1,-1): a(f"v_cvt_pk_bf16_f32 v{D2H+8+q}, v{D2H+2*q}, v{D2H+2*q+1}")
        D3=D2L+8
        a("s_waitcnt lgkmcnt(0)")
        a(f"v_mfma_f32_32x32x16_bf16 {vr(D3,16)}, {vr(WX[0])}, {vr(D2L)}, 0")
        a(f"v_mfma_f32_32x32x16_bf16 {vr(D3,16)}, {vr(WX[1])}, {vr(D2L+4)}, {vr(D3,16)}")
        a(f"v_mfma_f32_32x32x16_bf16 {vr(D3,16)}, {vr(WX[2])}, {vr(D2H+8)}, {vr(D3,16)}")
        a(f"v_mfma_f32_32x32x16_bf16 {vr(D3,16)}, {vr(WX[3])}, {vr(D2H+12)}, {vr(D3,16)}")
        a("s_mov_b32 exec_lo, 0x11111111")
        a("s_mov_b32 exec_hi, 0x11111111")
        a(f"s_cmp_eq_u32 s{S_FIRST}, 0")
        a(f"s_cbranch_scc1 K2_{tg}B")
        for q in range(0,8,2):
            i=8*((2*q)>>2)
            a(f"ds_write_b64 v{V_TA}, v[{D2L+q}:{D2L+q+1}] offset:{2*i}")
            a(f"ds_write_b64 v{V_TA}, v[{D2H+8+q}:{D2H+8+q+1}] offset:{64+2*i}")
        a(f"s_branch K2_{tg}C")
        a.label(f"K2_{tg}B")
        for q in range(8):
            i=((2*q)&3)+8*((2*q)>>2)
            a(f"ds_pk_add_bf16 v{V_TA}, v{D2L+q} offset:{2*i}")
            a(f"ds_pk_add_bf16 v{V_TA}, v{D2H+8+q} offset:{64+2*i}")
        a.label(f"K2_{tg}C")
        a(f"s_lshl_b32 s67, s68, 7")
        a(f"s_mul_i32 s69, s{S_W}, {1024-128}")
        a("s_add_u32 s67, s67, s69")
        a(f"s_add_u32 s67, s67, {L_POS}")
        a("s_mov_b64 exec, 0xffffffff")
        a(f"v_add_u32 v{T}, s67, v{V_LOFF}")
        a(f"s_cmp_eq_u32 s{S_FIRST}, 0")
        a(f"s_cbranch_scc1 K2_{tg}D")
        a(f"ds_write_b32 v{T}, v{D3}")
        a(f"s_branch K2_{tg}E")
        a.label(f"K2_{tg}D")
        a(f"ds_add_f32 v{T}, v{D3}")
        a.label(f"K2_{tg}E")
        a("s_mov_b64 exec, -1")
    a.label("K2_LOOP")
    if 'noprio' not in abl:
        if 'remprio' in abl:
            a(f"s_sub_u32 s55, s{S_TE}, s{S_TL}")
            a("s_cmp_ge_u32 s55, 4")
            a("s_cbranch_scc1 K2_P3")
            a("s_cmp_eq_u32 s55, 3")
            a("s_cbranch_scc1 K2_P2")
            a("s_cmp_eq_u32 s55, 2")
            a("s_cbranch_scc1 K2_P1")
        else:
            a(f"s_sub_u32 s55, s{S_TL}, s13")
            a("s_cmp_eq_u32 s55, 0")
            a("s_cbranch_scc1 K2_P3")
            a("s_cmp_eq_u32 s55, 1")
            a("s_cbranch_scc1 K2_P2")
            a("s_cmp_eq_u32 s55, 2")
            a("s_cbranch_scc1 K2_P1")
        a("s_setprio 0")
        a("s_branch K2_PD")
        a.label("K2_P1")
        a("s_setprio 1")
        a("s_branch K2_PD")
        a.label("K2_P2")
        a("s_setprio 2")
        a("s_branch K2_PD")
        a.label("K2_P3")
        a("s_setprio 3")
        a.label("K2_PD")
    a(f"s_add_u32 s55, s{S_TL}, s{S_RB}")
    a("s_lshl_b32 s55, s55, 5")
    a(f"s_mov_b32 s{S_GB}, 0")
    for g in range(4):
        a(f"s_cmp_ge_u32 s55, s{S_G1+g}")
        a(f"s_addc_u32 s{S_GB}, s{S_GB}, 0")
    a("s_add_u32 s55, s55, 31")
    a(f"s_sub_u32 s67, s{S_N}, 1")
    a("s_min_u32 s55, s55, s67")
    a(f"s_mov_b32 s{S_STR}, 0")
    for g in range(4):
        a(f"s_cmp_ge_u32 s55, s{S_G1+g}")
        a(f"s_addc_u32 s{S_STR}, s{S_STR}, 0")
    a(f"s_sub_u32 s{S_STR}, s{S_STR}, s{S_GB}")
    a("s_movk_i32 s67, 0x1e0")
    a(f"v_and_or_b32 v{V_TA}, v{V_INF}, s67, v{V_HH16}")
    a(f"ds_read_b128 {vr(X2)}, v{V_TA}")
    if 'sel' in abl:
        a(f"s_movk_i32 s67, {L_S2-L_SEL}")
        a(f"v_lshl_add_u32 v{V_TB}, v{V_HH16}, 5, s67")
        a(f"v_sub_u32 v{V_TB}, v{V_S2A}, v{V_TB}")
        for q in range(4): a(f"ds_read_b128 {vr(H+4*q)}, v{V_TB} offset:{q*1024}")
    a(f"s_cmp_eq_u32 s{S_GB}, s{S_ATG}")
    a("s_cbranch_scc1 K2_ATOK")
    a(f"s_lshl_b32 s67, s{S_GB}, 4")
    a(f"s_mul_i32 s68, s{S_W}, 2560")
    a("s_add_u32 s67, s67, s68")
    a(f"s_add_u32 s67, s67, {L_AT}")
    a(f"v_mul_u32_u24 v{V_TA}, 20, v{V_LOFF}")
    a(f"v_add3_u32 v{V_TA}, v{V_TA}, v{V_HH16}, s67")
    a(f"ds_read_b128 {vr(ATL)}, v{V_TA}")
    a(f"ds_read_b128 {vr(ATH)}, v{V_TA} offset:{32*80}")
    a(f"s_mov_b32 s{S_ATG}, s{S_GB}")
    a("s_mov_b32 s67, 0x05040100")
    a("s_mov_b32 s68, 0x07060100")
    a("s_waitcnt lgkmcnt(0)")
    a("s_mov_b32 exec_lo, 0")
    a(f"v_perm_b32 v{ATL+3}, v{V_WD}, v{ATL+3}, s67")
    a(f"v_perm_b32 v{ATH+3}, v{V_WD}, v{ATH+3}, s68")
    a("s_mov_b64 exec, -1")
    a.label("K2_ATOK")
    if 'sel' not in abl:
        a("s_waitcnt vmcnt(0)")
        for r in range(16): a(f"v_lshlrev_b32 v{L+r}, 16, v{G+r}")
        a("s_waitcnt lgkmcnt(0)")
        a("s_mov_b32 s67, 0xffff0000")
        a("s_mov_b32 exec_lo, 0")
        a(f"v_and_or_b32 v{X2+3}, v{V_INF}, s67, v{X2+3}")
        a("s_mov_b64 exec, -1")
        a(f"v_mfma_f32_32x32x16_bf16 {vr(H,16)}, {vr(X1)}, {vr(W3H)}, {vr(G,16)}")
        a(f"v_mfma_f32_32x32x16_bf16 {vr(L,16)}, {vr(X1)}, {vr(W3L)}, {vr(L,16)}")
        a(f"v_mfma_f32_32x32x16_bf16 {vr(H,16)}, {vr(X2)}, {vr(ATH)}, {vr(H,16)}")
        a(f"v_mfma_f32_32x32x16_bf16 {vr(L,16)}, {vr(X2)}, {vr(ATL)}, {vr(L,16)}")
    else:
        a("s_waitcnt lgkmcnt(0)")
        a("s_mov_b32 s67, 0xffff0000")
        a("s_mov_b32 exec_lo, 0")
        a(f"v_and_or_b32 v{X2+3}, v{V_INF}, s67, v{X2+3}")
        a("s_mov_b64 exec, -1")
        a("s_waitcnt vmcnt(0)")
        a(f"v_mfma_f32_32x32x16_bf16 {vr(L,16)}, {vr(H)}, {vr(G)}, 0")
        a(f"v_mfma_f32_32x32x16_bf16 {vr(L,16)}, {vr(H+4)}, {vr(G+4)}, {vr(L,16)}")
        a(f"v_mfma_f32_32x32x16_bf16 {vr(L,16)}, {vr(H+8)}, {vr(G+8)}, {vr(L,16)}")
        a(f"v_mfma_f32_32x32x16_bf16 {vr(L,16)}, {vr(H+12)}, {vr(G+12)}, {vr(L,16)}")
        a(f"v_mfma_f32_32x32x16_bf16 {vr(H,16)}, {vr(X1)}, {vr(W3H)}, {vr(G,16)}")
        a(f"v_mfma_f32_32x32x16_bf16 {vr(H,16)}, {vr(X2)}, {vr(ATH)}, {vr(H,16)}")
        a(f"v_mfma_f32_32x32x16_bf16 {vr(L,16)}, {vr(X1)}, {vr(W3L)}, {vr(L,16)}")
        a(f"v_mfma_f32_32x32x16_bf16 {vr(L,16)}, {vr(X2)}, {vr(ATL)}, {vr(L,16)}")
    a(f"s_add_u32 s{S_NXT}, s{S_TL}, 1")
    a("s_nop 3")
    issue_loads(S_NXT)
    a(f"s_lshl_b32 s67, s{S_TL}, 11")
    a(f"v_add_u32 v{T+7}, s67, v{V_S2A}")
    a(f"ds_read_b128 {vr(S2A)}, v{T+7}")
    a(f"ds_read_b128 {vr(X2)}, v{T+7} offset:512")
    def nextloads():
        a(f"s_cmp_ge_u32 s{S_NXT}, s{S_TE}")
        a("s_cbranch_scc1 K2_NONEXT")
        a("s_waitcnt lgkmcnt(2)")
        issue_loads2()
        a("s_branch K2_NONEXT2")
        a.label("K2_NONEXT")
        a(f"s_cmp_eq_u32 s{S_PRE}, 0")
        a("s_cbranch_scc1 K2_NONEXT2")
        a("s_waitcnt lgkmcnt(2)")
        a(f"v_mbcnt_lo_u32_b32 v{V_TA}, -1, 0")
        a(f"v_mbcnt_hi_u32_b32 v{V_TA}, -1, v{V_TA}")
        a(f"v_lshlrev_b32 v{V_TA}, 4, v{V_TA}")
        load_f(F1, IMG_WH1, V_TA)
        a("s_mov_b32 s15, 1")
        a.label("K2_NONEXT2")
    def silu_blk(base, first):
        for c in range(2):
            y=base+8*c
            for j in range(8): a(f"v_exp_f32 v{T+j}, v{y+j}")
            for j in range(4): a(f"v_pk_add_f32 v[{T+2*j}:{T+2*j+1}], v[{T+2*j}:{T+2*j+1}], 1.0")
            for j in range(8): a(f"v_rcp_f32 v{T+j}, v{T+j}")
            for j in range(4): a(f"v_pk_mul_f32 v[{T+2*j}:{T+2*j+1}], v[{T+2*j}:{T+2*j+1}], v[{y+2*j}:{y+2*j+1}]")
            for j in range(4): a(f"v_cvt_pk_bf16_f32 v{base+4*c+j}, v{T+2*j}, v{T+2*j+1}")
            if first and c==0: nextloads()
    def silu(base, first):
        if 'blk' in abl: return silu_blk(base, first)
        tp=lambda p: T+(2*p)%8
        for p in range(8+3):
            if p<8:
                a(f"v_exp_f32 v{tp(p)}, v{base+2*p}")
                a(f"v_exp_f32 v{tp(p)+1}, v{base+2*p+1}")
            q=p-1
            if 0<=q<8:
                a(f"v_pk_add_f32 v[{tp(q)}:{tp(q)+1}], v[{tp(q)}:{tp(q)+1}], 1.0")
                a(f"v_rcp_f32 v{tp(q)}, v{tp(q)}")
                a(f"v_rcp_f32 v{tp(q)+1}, v{tp(q)+1}")
            q=p-2
            if 0<=q<8:
                a(f"v_pk_mul_f32 v[{tp(q)}:{tp(q)+1}], v[{tp(q)}:{tp(q)+1}], v[{base+2*q}:{base+2*q+1}]")
            q=p-3
            if 0<=q<8:
                a(f"v_cvt_pk_bf16_f32 v{base+q}, v{tp(q)}, v{tp(q)+1}")
            if first and p==NLP: nextloads()
    NLP = -1 if 'early' in abl else (7 if 'later' in abl else 4)
    if NLP<0 and 'blk' not in abl: nextloads()
    silu(H,True)
    silu(L,False)
    a(f"s_mov_b32 s{S_PG}, s{S_GB}")
    a.label("K2_PASS")
    a(f"s_cmp_eq_u32 s{S_PG}, s{S_CUR}")
    a("s_cbranch_scc1 K2_ACC")
    a(f"s_cmp_lt_i32 s{S_CUR}, 0")
    a("s_cbranch_scc1 K2_NOFL")
    flush()
    a.label("K2_NOFL")
    a(f"s_mov_b32 s{S_CUR}, s{S_PG}")
    a("s_waitcnt lgkmcnt(0)")
    a(f"v_mfma_f32_32x32x16_bf16 {vr(D2L,16)}, {vr(L)}, {vr(S2A)}, 0")
    a(f"v_mfma_f32_32x32x16_bf16 {vr(D2H,16)}, {vr(H)}, {vr(S2A)}, 0")
    a("s_branch K2_ACC2")
    a.label("K2_ACC")
    a("s_waitcnt lgkmcnt(0)")
    a(f"v_mfma_f32_32x32x16_bf16 {vr(D2L,16)}, {vr(L)}, {vr(S2A)}, {vr(D2L,16)}")
    a(f"v_mfma_f32_32x32x16_bf16 {vr(D2H,16)}, {vr(H)}, {vr(S2A)}, {vr(D2H,16)}")
    a.label("K2_ACC2")
    a(f"v_mfma_f32_32x32x16_bf16 {vr(D2L,16)}, {vr(L+4)}, {vr(X2)}, {vr(D2L,16)}")
    a(f"v_mfma_f32_32x32x16_bf16 {vr(D2H,16)}, {vr(H+4)}, {vr(X2)}, {vr(D2H,16)}")
    a(f"s_cmp_eq_u32 s{S_STR}, 0")
    a("s_cbranch_scc1 K2_NEXT")
    a(f"s_mov_b32 s{S_STR}, 0")
    a(f"s_add_u32 s{S_PG}, s{S_GB}, 1")
    a(f"s_add_u32 s67, s{S_GB}, {TCAP}")
    a("s_lshl_b32 s67, s67, 11")
    a(f"v_add_u32 v{T+7}, s67, v{V_S2A}")
    a("s_nop 7")
    a(f"ds_read_b128 {vr(S2A)}, v{T+7}")
    a(f"ds_read_b128 {vr(X2)}, v{T+7} offset:512")
    a("s_branch K2_PASS")
    a.label("K2_NEXT")
    a(f"s_add_u32 s{S_TL}, s{S_TL}, 1")
    a(f"s_cmp_lt_u32 s{S_TL}, s{S_TE}")
    a("s_cbranch_scc1 K2_LOOP")
    flush()
    a.label("K2_LOOPEND")
    a("s_setprio 0")
    stamp(7)
    a(f"s_cmp_eq_u32 s{S_FIRST}, 0")
    a("s_cbranch_scc1 K2_NOSAVE")
    for g in range(4): a(f"s_mov_b32 s{8+g}, s{S_G1+g}")
    a(f"s_mov_b32 s12, s{S_PER}")
    a.label("K2_NOSAVE")
    a(f"s_mov_b32 s{S_FIRST}, 0")
    a(f"s_cmp_lg_u32 s{S_PRE}, 0")
    a("s_cbranch_scc1 K2_EPI")
    a("s_waitcnt vmcnt(0) lgkmcnt(0)")
    a(f"s_add_u32 s{S_RB}, s{S_RB}, {TCAP}")
    a(f"s_cmp_lt_u32 s{S_RB}, s{S_T}")
    a("s_cbranch_scc0 K2_OVNEXT")
    a("s_barrier")
    a("s_branch K2_ROUND")
    a.label("K2_OVNEXT")
    a(f"s_lshl_b32 s55, s{S_OCH}, 11")
    a(f"s_cmp_lt_u32 s55, s{S_OCN}")
    a("s_cbranch_scc1 K2_OVGO")
    a(f"s_cmp_eq_u64 s[{S_OVM}:{S_OVM+1}], 0")
    a("s_cbranch_scc1 K2_EPI")
    a(f"s_ff1_i32_b64 s{S_OP}, s[{S_OVM}:{S_OVM+1}]")
    a(f"s_bitset0_b64 s[{S_OVM}:{S_OVM+1}], s{S_OP}")
    a(f"s_lshl_b32 s55, s{S_OP}, 2")
    a(f"s_add_u32 s55, s55, {WS_OVC}")
    a("v_mov_b32 v100, 0")
    a("buffer_load_dword v100, v100, s[40:43], s55 offen")
    a("s_waitcnt vmcnt(0)")
    a(f"v_readfirstlane_b32 s{S_OCN}, v100")
    a(f"s_min_u32 s{S_OCN}, s{S_OCN}, {EPP}")
    a(f"s_mov_b32 s{S_OCH}, 0")
    a("s_branch K2_OVNEXT")
    a.label("K2_OVGO")
    a("s_mov_b32 s69, s55")
    a("s_barrier")
    lane_tid()
    a(f"s_mul_i32 s{S_RB0}, s{S_OP}, 40000")
    a(f"s_add_u32 s{S_RB0}, s{S_RB0}, {WS_OVF}")
    a("s_lshl_b32 s67, s69, 4")
    a(f"s_add_u32 s{S_RB0}, s{S_RB0}, s67")
    a(f"s_add_u32 s{S_RB1}, s{S_RB0}, 16384")
    a(f"s_add_u32 s{S_OCH}, s{S_OCH}, 1")
    a(f"s_cmp_ge_u32 s{S_WAVE}, 8")
    a("s_cbranch_scc1 K2_OVG2")
    load_recs(True)
    a(f"v_lshlrev_b32 v120, 2, v{V_TID}")
    a(f"v_add_u32 v120, {L_CNT}, v120")
    a("v_mov_b32 v121, 0")
    a(f"v_cmp_gt_u32 vcc, 40, v{V_TID}")
    a("s_and_saveexec_b64 s[70:71], vcc")
    a("ds_write_b32 v120, v121")
    a("s_mov_b64 exec, s[70:71]")
    a("s_waitcnt vmcnt(0) lgkmcnt(0)")
    for k,(rec,val) in enumerate(((100,S_V0),(104,S_V1),(108,S_V2),(112,S_V3))):
        a(f"v_add_u32 v120, s69, v{V_TID}")
        if k: a(f"v_add_u32 v120, {512*k}, v120")
        a(f"v_cmp_gt_u32 s[{val}:{val+1}], s{S_OCN}, v120")
        a(f"v_and_b32 v121, 0xff, v{rec}")
        a("v_cmp_eq_u32 vcc, s2, v121")
        a(f"s_and_b64 s[{val}:{val+1}], s[{val}:{val+1}], vcc")
    a.label("K2_OVG2")
    a("s_barrier")
    a("s_branch K2_BATCH")
    a.label("K2_EPI")
    lane_tid()
    a(f"v_lshlrev_b32 v123, 4, v{V_LANE}")
    a("s_cmp_lg_u32 s15, 0")
    a("s_cbranch_scc1 K2_F1OK")
    load_f(F1, IMG_WH1, 123)
    a.label("K2_F1OK")
    load_f(F2, IMG_WH2, 123)
    a(f"v_and_b32 v116, 15, v{V_LANE}")
    a(f"v_lshrrev_b32 v117, 4, v{V_LANE}")
    a("v_xor_b32 v118, v116, v117")
    a("v_lshlrev_b32 v118, 4, v118")
    a("v_lshl_add_u32 v118, v116, 9, v118")
    a(f"v_add_u32 v118, {L_HT}, v118")
    a(f"v_mul_u32_u24 v119, {MI_STR}, v116")
    a("v_lshl_add_u32 v119, v117, 4, v119")
    a(f"v_add_u32 v119, {L_MI}, v119")
    XF0=92; XF1=24; UC=104
    XF=lambda step: XF0 if step%2==0 else XF1
    def rdx(step):
        ks=step%8
        if step<8:
            a(f"v_xor_b32 v120, {ks<<6}, v118")
            for ct in range(3): a(f"ds_read_b128 {vr(XF(step)+4*ct)}, v120 offset:{ct*8192}")
        else:
            for ct in range(3): a(f"ds_read_b128 {vr(XF(step)+4*ct)}, v119 offset:{ct*16*MI_STR+ks*64}")
    def gemm(s0):
        rdx(s0)
        for step in range(s0,s0+8):
            if step<s0+7:
                rdx(step+1); a("s_waitcnt lgkmcnt(3)")
            else: a("s_waitcnt lgkmcnt(0)")
            if step==0: a("s_waitcnt vmcnt(8)")
            if step==8: a("s_waitcnt vmcnt(0)")
            wf=F1[step] if step<8 else F2[step-8]
            for ct in range(3):
                c='0' if step==0 else vr(UC+4*ct)
                a(f"v_mfma_f32_16x16x32_bf16 {vr(UC+4*ct)}, {vr(wf)}, {vr(XF(step)+4*ct)}, {c}")
    gemm(0)
    a("s_barrier")
    stamp(8)
    a(f"v_lshrrev_b32 v120, 7, v{V_TID}")
    a(f"v_mul_u32_u24 v120, {MI_STR}, v120")
    a(f"v_and_b32 v121, 127, v{V_TID}")
    a("v_lshl_add_u32 v120, v121, 2, v120")
    a(f"v_add_u32 v120, {L_MI}, v120")
    a("s_mov_b32 s58, 0xffff0000")
    for s in range(1,4):
        a(f"s_mul_i32 s55, s12, {32*s}")
        a("s_mov_b32 s56, 0")
        for g in range(4):
            a(f"s_cmp_ge_u32 s55, s{8+g}")
            a("s_addc_u32 s56, s56, 0")
        a(f"s_mov_b32 s{59+s}, s56")
        a(f"s_mul_i32 s57, s56, {8*MI_STR}")
        a("v_add_u32 v121, s57, v120")
        a("ds_read_b32 v40, v121")
        a(f"ds_read_b32 v41, v120 offset:{(32+8*s)*MI_STR}")
        a("s_waitcnt lgkmcnt(0)")
        a("v_lshlrev_b32 v36, 16, v40")
        a("v_and_b32 v37, s58, v40")
        a("v_lshlrev_b32 v38, 16, v41")
        a("v_and_b32 v39, s58, v41")
        a("v_add_f32 v36, v36, v38")
        a("v_add_f32 v37, v37, v39")
        a("v_cvt_pk_bf16_f32 v40, v36, v37")
        a("ds_write_b32 v121, v40")
    a("s_waitcnt lgkmcnt(0)")
    a("s_barrier")
    gemm(8)
    a(f"s_lshl_b32 s55, s{S_WAVE}, 1")
    a("v_lshrrev_b32 v120, 1, v117")
    a("v_add_u32 v120, s55, v120")
    a("v_xor_b32 v120, v120, v116")
    a("v_lshlrev_b32 v120, 4, v120")
    a("v_lshl_add_u32 v120, v116, 9, v120")
    a("v_and_b32 v121, 1, v117")
    a("v_lshl_add_u32 v120, v121, 3, v120")
    a(f"v_add_u32 v120, {L_HT}, v120")
    for ct in range(3): a(f"ds_read_b64 v[{36+2*ct}:{37+2*ct}], v120 offset:{ct*8192}")
    a("s_mul_i32 s55, s2, 40")
    a("s_lshl_b32 s55, s55, 9")
    a(f"s_lshl_b32 s56, s{S_WAVE}, 5")
    a("s_add_u32 s55, s55, s56")
    a("v_lshlrev_b32 v121, 9, v116")
    a("v_lshl_add_u32 v121, v117, 3, v121")
    a(f"s_mov_b32 s56, {f2u(-LOG2E)}")
    a("s_mov_b32 s57, 0xffff0000")
    a("s_waitcnt lgkmcnt(0)")
    a("s_mov_b32 s58, s56") if False else None
    a(f"s_mov_b32 s66, {f2u(-LOG2E)}")
    a(f"s_mov_b32 s67, {f2u(-LOG2E)}")
    for ct in range(3):
        u=UC+4*ct
        for r in (0,2): a(f"v_pk_mul_f32 v[{8+r}:{9+r}], v[{u+r}:{u+r+1}], s[66:67]")
        for r in range(4): a(f"v_exp_f32 v{8+r}, v{8+r}")
        h0,h1=36+2*ct,37+2*ct
        a(f"v_lshlrev_b32 v12, 16, v{h0}")
        a(f"v_and_b32 v13, s57, v{h0}")
        for r in (0,2): a(f"v_pk_add_f32 v[{8+r}:{9+r}], v[{8+r}:{9+r}], 1.0")
        for r in range(4): a(f"v_rcp_f32 v{8+r}, v{8+r}")
        a(f"v_lshlrev_b32 v14, 16, v{h1}")
        a(f"v_and_b32 v15, s57, v{h1}")
        for r in (0,2): a(f"v_pk_fma_f32 v[{8+r}:{9+r}], v[{8+r}:{9+r}], v[{u+r}:{u+r+1}], v[{12+r}:{13+r}]")
        a(f"v_cvt_pk_bf16_f32 v{16+2*ct}, v8, v9")
        a(f"v_cvt_pk_bf16_f32 v{17+2*ct}, v10, v11")
        if ct==2:
            a("v_cmp_gt_u32 vcc, 8, v116")
            a("s_and_saveexec_b64 s[70:71], vcc")
        a(f"s_add_u32 s58, s55, {ct*8192}")
        a(f"buffer_store_dwordx2 v[{16+2*ct}:{17+2*ct}], v121, s[44:47], s58 offen")
        if ct==2: a("s_mov_b64 exec, s[70:71]")
    stamp(9)
    rstamp(15)
    stamp_out()
    a(f"s_cmp_ge_u32 s{S_WAVE}, 2")
    a("s_cbranch_scc1 K2_END")
    a(f"v_mbcnt_lo_u32_b32 v{V_LANE}, -1, 0")
    a(f"v_mbcnt_hi_u32_b32 v{V_LANE}, -1, v{V_LANE}")
    a(f"s_lshl_b32 s55, s{S_WAVE}, 6")
    a(f"v_add_u32 v8, s55, v{V_LANE}")
    a("v_mul_u32_u24 v9, 0x5556, v8")
    a("v_lshrrev_b32 v9, 16, v9")
    a("v_mul_u32_u24 v10, 3, v9")
    a("v_sub_u32 v10, v8, v10")
    a("v_lshrrev_b32 v15, 3, v9")
    a("v_and_b32 v16, 7, v9")
    a("v_lshl_add_u32 v16, v16, 2, v10")
    a("v_lshlrev_b32 v16, 2, v16")
    a(f"v_add_u32 v16, {L_POS+4}, v16")
    a("v_lshl_add_u32 v11, v15, 7, v16")
    for w in range(4): a(f"ds_read_b32 v{20+w}, v11 offset:{w*1024}")
    for s in range(1,4):
        for w in range(4): a(f"ds_read_b32 v{20+4*s+w}, v16 offset:{w*1024+(4+s)*128}")
    srd(a,72,6,N*6)
    a("s_mul_i32 s55, s2, 240")
    a("v_lshlrev_b32 v13, 1, v8")
    a("v_cmp_gt_u32 vcc, 120, v8")
    a("s_and_saveexec_b64 s[70:71], vcc")
    a("s_cbranch_execz K2_END")
    a("buffer_load_ushort v14, v13, s[72:75], s55 offen")
    a("s_waitcnt lgkmcnt(0)")
    a("v_add_f32 v20, v20, v21")
    a("v_add_f32 v22, v22, v23")
    a("v_add_f32 v12, v20, v22")
    for s in range(1,4):
        b=20+4*s
        a(f"v_add_f32 v{b}, v{b}, v{b+1}")
        a(f"v_add_f32 v{b+2}, v{b+2}, v{b+3}")
        a(f"v_add_f32 v{b}, v{b}, v{b+2}")
        a(f"v_cmp_eq_u32 vcc, s{59+s}, v15")
        a(f"v_cndmask_b32 v{b}, 0, v{b}, vcc")
        a(f"v_add_f32 v12, v12, v{b}")
    a(f"s_mov_b32 s56, {f2u(-LN2)}")
    a("s_waitcnt vmcnt(0)")
    a("v_lshlrev_b32 v14, 16, v14")
    a("v_fma_f32 v14, v12, s56, v14")
    a("v_cvt_pk_bf16_f32 v14, v14, v14")
    a(f"s_add_u32 s55, s55, {N*512}")
    a("buffer_store_short v14, v13, s[44:47], s55 offen")
    a.label("K2_END")
    a("s_endpgm")
    return a
```

```python
from asmgen import Asm
from k1 import *
TCAP=24
MI_STR=544
L_LUT=0
L_SEL=512
L_W3=512
L_S2=8704
L_MI=L_S2+(TCAP+4)*2048
L_POS=L_MI+64*MI_STR
L_CNT=L_POS+4096
L_OVM=L_CNT+248
ZERO_BEG=L_S2; ZERO_END=L_CNT+256
L_AT=(ZERO_END+511)//512*512
L_HT=L_AT+20480
L_OFF=L_HT+20480
L_EI=L_OFF+TCAP*128
L_WXF=L_EI+TCAP*256
L_SB=L_WXF+512
K2_LDS=L_SB+64
NZ=(ZERO_END-ZERO_BEG+16383)//16384
assert ZERO_BEG+NZ*16384 <= L_HT
assert L_HT+48*512 <= K2_LDS and K2_LDS<=163840 and L_HT%512==0
PADOFF=0x500000
V_S2A=0; V_HH16=1; V_LOFF=2; V_WD=3; V_EIA=4; V_INF=5; V_TA=6; V_TB=7
W3L=8; W3H=12; ATL=16; ATH=20; X1=24; X2=28; S2A=32; T=36; G=44; L=60; H=76; D2L=92; D2H=108
V_PP=124; V_PP2=125; V_LANE=126; V_TMP=127; V_TMP2=123; V_TID=122
def vr(b,n=4): return f"v[{b}:{b+n-1}]"
S_WAVE=52; S_W=53; S_SUB=54; S_G1=56; S_N=60; S_T=61; S_TL=62; S_TE=63; S_CUR=64; S_ATG=65; S_RB=66
S_V0=76; S_V1=78; S_V2=16; S_V3=18; S_FIRST=80; S_PRE=81; S_OVM=82; S_OCH=84; S_OCN=85; S_OP=86; S_RB0=87; S_RB1=88; S_CONT=89
S_GB=92; S_STR=93; S_NXT=94; S_PER=95; S_PG=96

def gen_k2(dbg=False, abl=()):
    a=Asm()
    def stamp(i):
        if not dbg: return
        a(f"s_memtime s[90:91]")
        a("s_waitcnt lgkmcnt(0)")
        a(f"v_writelane_b32 v{V_TMP}, s90, {i}")
    def rstamp(i):
        if not dbg: return
        a(f"s_memrealtime s[90:91]")
        a("s_waitcnt lgkmcnt(0)")
        a(f"v_writelane_b32 v{V_TMP}, s90, {i}")
    def stamp_out():
        if not dbg: return
        a(f"s_cmp_eq_u32 s2, {dbg-1}")
        a(f"s_cbranch_scc0 K2_STX")
        a(f"v_mbcnt_lo_u32_b32 v{V_LANE}, -1, 0")
        a(f"v_mbcnt_hi_u32_b32 v{V_LANE}, -1, v{V_LANE}")
        a(f"s_lshl_b32 s90, s{S_WAVE}, 6")
        a(f"v_lshl_add_u32 v{V_LANE}, v{V_LANE}, 2, s90")
        a(f"s_mov_b64 exec, 0xffff")
        a(f"global_store_dword v{V_LANE}, v{V_TMP}, s[22:23]")
        a(f"s_mov_b64 exec, -1")
        a.label("K2_STX")
        a(f"s_cmp_eq_u32 s{S_WAVE}, 15")
        a("s_cbranch_scc0 K2_RT")
        a("s_memrealtime s[90:91]")
        a("s_waitcnt lgkmcnt(0)")
        a("v_mov_b32 v8, s26")
        a("v_mov_b32 v9, s90")
        a("s_lshl_b32 s90, s2, 3")
        a("s_add_u32 s90, s90, 0x2000000")
        a("v_mov_b32 v10, s90")
        a("global_store_dwordx2 v10, v[8:9], s[24:25]")
        a.label("K2_RT")
    def lane_tid():
        a(f"v_mbcnt_lo_u32_b32 v{V_LANE}, -1, 0")
        a(f"v_mbcnt_hi_u32_b32 v{V_LANE}, -1, v{V_LANE}")
        a(f"s_lshl_b32 s55, s{S_WAVE}, 6")
        a(f"v_add_u32 v{V_TID}, s55, v{V_LANE}")
    def pad_tables(tid16, t0):
        a(f"v_mov_b32 v{t0}, {PADOFF}")
        a(f"v_mov_b32 v{t0+1}, {15<<5}")
        a(f"v_mov_b32 v{t0+2}, {PADOFF}")
        a(f"v_mov_b32 v{t0+3}, {15<<5}")
        a(f"v_add_u32 v{t0+4}, {L_EI}, v{tid16}")
        a(f"v_cmp_gt_u32 vcc, {TCAP*16}, v{V_TID}")
        a("s_and_saveexec_b64 s[70:71], vcc")
        a(f"ds_write_b128 v{t0+4}, {vr(t0)}")
        a("s_mov_b64 exec, s[70:71]")
        a(f"v_mov_b32 v{t0+1}, {PADOFF}")
        a(f"v_mov_b32 v{t0+3}, {PADOFF}")
        a(f"v_add_u32 v{t0+4}, {L_OFF}, v{tid16}")
        a(f"v_cmp_gt_u32 vcc, {TCAP*8}, v{V_TID}")
        a("s_and_saveexec_b64 s[70:71], vcc")
        a(f"ds_write_b128 v{t0+4}, {vr(t0)}")
        a("s_mov_b64 exec, s[70:71]")
    def zero_region(tid16, t0, beg, n16k, end=None):
        for i in range(4): a(f"v_mov_b32 v{t0+i}, 0")
        a(f"v_add_u32 v{t0+4}, {beg}, v{tid16}")
        for k in range(n16k):
            if k==3: a(f"v_add_u32 v{t0+4}, {3*16384}, v{t0+4}")
            lim = end is not None and k==n16k-1 and beg+n16k*16384>end
            if lim:
                a(f"v_cmp_gt_u32 vcc, {(end-beg-(n16k-1)*16384)//16}, v{V_TID}")
                a("s_and_saveexec_b64 s[70:71], vcc")
            a(f"ds_write_b128 v{t0+4}, {vr(t0)} offset:{(k%3)*16384}")
            if lim: a("s_mov_b64 exec, s[70:71]")

    sbn=[0]
    def sb_arrive(idx, tmp):
        a(f"v_mov_b32 v{tmp}, {L_SB+4*idx}")
        a(f"v_mov_b32 v{tmp+1}, 1")
        a("s_mov_b64 exec, 1")
        a(f"ds_add_u32 v{tmp}, v{tmp+1}")
        a("s_mov_b64 exec, -1")
    def sb_wait(idx, tmp, target=8):
        sbn[0]+=1; l=f"K2_SBW{sbn[0]}"
        a(f"v_mov_b32 v{tmp}, {L_SB+4*idx}")
        a.label(l)
        a(f"ds_read_b32 v{tmp+1}, v{tmp}")
        a("s_waitcnt lgkmcnt(0)")
        a(f"v_readfirstlane_b32 s69, v{tmp+1}")
        a(f"s_cmp_ge_u32 s69, {target}")
        a(f"s_cbranch_scc1 {l}X")
        a("s_sleep 1")
        a(f"s_branch {l}")
        a.label(l+"X")
    RECS=((100,S_V0),(104,S_V1),(108,S_V2),(112,S_V3))
    DL=lambda k: 60+k; CA=lambda k: 64+k; RK=lambda k: 68+k; RL=lambda k: 72+k
    def load_recs(all4):
        a(f"v_lshlrev_b32 v121, 4, v{V_TID}")
        a(f"v_add_u32 v120, 8192, v121")
        a(f"buffer_load_dwordx4 v[100:103], v121, s[40:43], s{S_RB0} offen")
        a(f"buffer_load_dwordx4 v[104:107], v120, s[40:43], s{S_RB0} offen")
        if all4:
            a(f"buffer_load_dwordx4 v[108:111], v121, s[40:43], s{S_RB1} offen")
            a(f"buffer_load_dwordx4 v[112:115], v120, s[40:43], s{S_RB1} offen")
    def zero512(beg, end, t0):
        n=(end-beg+8191)//8192
        for i in range(4): a(f"v_mov_b32 v{t0+i}, 0")
        a(f"v_add_u32 v{t0+4}, {beg}, v121")
        for k in range(n):
            if k and k%7==0: a(f"v_add_u32 v{t0+4}, {7*8192}, v{t0+4}")
            lim = (k==n-1 and beg+n*8192>end)
            if lim:
                a(f"v_cmp_gt_u32 vcc, {(end-beg-(n-1)*8192)//16}, v{V_TID}")
                a("s_and_saveexec_b64 s[70:71], vcc")
            a(f"ds_write_b128 v{t0+4}, {vr(t0)} offset:{(k%7)*8192}")
            if lim: a("s_mov_b64 exec, s[70:71]")
    def pad512(t0):
        a(f"v_mov_b32 v{t0}, {PADOFF}")
        a(f"v_mov_b32 v{t0+1}, {15<<5}")
        a(f"v_mov_b32 v{t0+2}, {PADOFF}")
        a(f"v_mov_b32 v{t0+3}, {15<<5}")
        a(f"v_add_u32 v{t0+4}, {L_EI}, v121")
        a(f"v_cmp_gt_u32 vcc, {TCAP*16}, v{V_TID}")
        a("s_and_saveexec_b64 s[70:71], vcc")
        a(f"ds_write_b128 v{t0+4}, {vr(t0)}")
        a("s_mov_b64 exec, s[70:71]")
        a(f"v_mov_b32 v{t0+1}, {PADOFF}")
        a(f"v_mov_b32 v{t0+3}, {PADOFF}")
        a(f"v_add_u32 v{t0+4}, {L_OFF}, v121")
        a(f"v_cmp_gt_u32 vcc, {TCAP*8}, v{V_TID}")
        a("s_and_saveexec_b64 s[70:71], vcc")
        a(f"ds_write_b128 v{t0+4}, {vr(t0)}")
        a("s_mov_b64 exec, s[70:71]")
    assert TCAP*16<=512
    def small_loads():
        a(f"s_mov_b32 s13, {512*512}")
        a(f"buffer_load_dword v{V_WD}, v{V_LOFF}, s[48:51], s13 offen")
    a(f"s_cmp_ge_u32 s2, {NB}")
    a("s_cbranch_scc1 K2_END")
    if dbg: a("s_memrealtime s[26:27]")
    a("s_load_dwordx2 s[24:25], s[0:1], 80")
    a("s_load_dwordx16 s[4:19], s[0:1], 0")
    a("s_load_dwordx4 s[20:23], s[0:1], 64")
    a(f"v_mov_b32 v{V_TID}, v0")
    a(f"v_and_b32 v{V_LANE}, 63, v0")
    a("v_lshrrev_b32 v120, 6, v0")
    a(f"v_readfirstlane_b32 s{S_WAVE}, v120")
    a(f"s_lshl_b32 s{S_RB0}, s2, 15")
    a(f"s_add_u32 s{S_RB0}, s{S_RB0}, {WS_CELL}")
    a(f"s_add_u32 s{S_RB1}, s{S_RB0}, 16384")
    a(f"s_and_b32 s{S_W}, s{S_WAVE}, 3")
    a(f"s_lshr_b32 s{S_SUB}, s{S_WAVE}, 2")
    a(f"v_and_b32 v{V_TA}, 31, v{V_LANE}")
    a(f"v_lshrrev_b32 v{V_TB}, 5, v{V_LANE}")
    a(f"v_lshlrev_b32 v{V_TMP2}, 4, v{V_LANE}")
    a(f"v_lshlrev_b32 v{V_HH16}, 4, v{V_TB}")
    a(f"s_lshl_b32 s55, s{S_W}, 7")
    a(f"v_lshl_add_u32 v{V_LOFF}, v{V_TA}, 2, s55")
    a(f"v_lshlrev_b32 v{V_S2A}, 10, v{V_TB}")
    a(f"v_lshl_add_u32 v{V_S2A}, v{V_TA}, 4, v{V_S2A}")
    a(f"v_add_u32 v{V_S2A}, {L_S2}, v{V_S2A}")
    a(f"v_bfe_u32 v121, v{V_TA}, 2, 1")
    a(f"v_lshlrev_b32 v{V_EIA}, 4, v121")
    a(f"v_and_b32 v121, 3, v{V_TA}")
    a(f"v_add_u32 v{V_EIA}, v{V_EIA}, v121")
    a(f"v_lshrrev_b32 v121, 3, v{V_TA}")
    a(f"v_lshl_add_u32 v{V_EIA}, v121, 2, v{V_EIA}")
    a(f"v_lshlrev_b32 v{V_EIA}, 3, v{V_EIA}")
    a(f"v_add_u32 v{V_EIA}, {L_EI}, v{V_EIA}")
    a("s_lshl_b32 s55, s2, 8")
    a(f"s_add_u32 s55, s55, {WS_HDR}")
    a(f"v_lshrrev_b32 v120, 4, v{V_TID}")
    a("v_lshlrev_b32 v120, 2, v120")
    a(f"v_lshlrev_b32 v8, 2, v{V_LANE}")
    a(f"v_add_u32 v8, {L_SB}, v8")
    a("v_mov_b32 v9, 0")
    a("s_mov_b64 exec, 0xffff")
    a("ds_write_b32 v8, v9")
    a("s_mov_b64 exec, -1")
    a("s_waitcnt lgkmcnt(0)")
    a("s_barrier")
    stamp(0)
    rstamp(14)
    srd(a,40,24,WS_END)
    srd(a,32,8,E*32)
    srd(a,36,24,WS_B_SIZE)
    srd(a,44,20,2590000*2)
    a(f"s_mov_b32 s{S_FIRST}, 1")
    a(f"s_mov_b64 s[{S_OVM}:{S_OVM+1}], 0")
    a(f"s_mov_b32 s{S_OCH}, 0")
    a(f"s_mov_b32 s{S_OCN}, 0")
    a(f"s_mov_b32 s{S_OP}, 0")
    a(f"s_mov_b32 s{S_PRE}, 0")
    a(f"s_cmp_ge_u32 s{S_WAVE}, 8")
    a("s_cbranch_scc1 K2_GW")
    a("buffer_load_dword v116, v120, s[40:43], s55 offen")
    a("buffer_load_dword v117, v120, s[40:43], s55 offen offset:128")
    load_recs(False)
    srd(a,48,14,529*512)
    a("s_mov_b32 s14, 0")
    zero512(ZERO_BEG, ZERO_END, 24)
    a("s_waitcnt vmcnt(2)")
    a(f"v_and_b32 v119, 15, v{V_TID}")
    a(f"v_cmp_lt_u32 s[{S_V0}:{S_V0+1}], v119, v116")
    a(f"v_cmp_lt_u32 s[{S_V1}:{S_V1+1}], v119, v117")
    a("v_add_u32 v119, 16, v119")
    a(f"v_cmp_lt_u32 s[{S_V2}:{S_V2+1}], v119, v116")
    a(f"v_cmp_lt_u32 s[{S_V3}:{S_V3+1}], v119, v117")
    a(f"s_mov_b64 exec, s[{S_V2}:{S_V2+1}]")
    a("s_cbranch_execz K2_NOA1")
    a(f"buffer_load_dwordx4 v[108:111], v121, s[40:43], s{S_RB1} offen")
    a.label("K2_NOA1")
    a(f"s_mov_b64 exec, s[{S_V3}:{S_V3+1}]")
    a("s_cbranch_execz K2_NOB1")
    a(f"buffer_load_dwordx4 v[112:115], v120, s[40:43], s{S_RB1} offen")
    a.label("K2_NOB1")
    a("s_mov_b64 exec, -1")
    pad512(24)
    a(f"v_lshrrev_b32 v92, 1, v{V_TID}")
    a(f"v_and_b32 v93, 1, v{V_TID}")
    a("v_lshlrev_b32 v93, 3, v93")
    a("v_sub_u32 v92, v92, v93")
    a("v_lshrrev_b32 v93, 1, v92")
    a("v_and_b32 v94, 1, v92")
    a("v_lshlrev_b32 v94, 4, v94")
    a("v_mov_b32 v95, 0x3f80")
    a("v_lshlrev_b32 v95, v94, v95")
    for q in range(4):
        a(f"v_cmp_eq_u32 vcc, {q}, v93")
        a(f"v_cndmask_b32 v{24+q}, 0, v95, vcc")
    a(f"v_cmp_eq_u32 vcc, 31, v{V_TID}")
    a("v_cndmask_b32 v27, v27, 0, vcc")
    a(f"v_cmp_gt_u32 vcc, 32, v{V_TID}")
    a("s_and_saveexec_b64 s[70:71], vcc")
    a("ds_write_b128 v121, v[24:27]")
    a("s_mov_b64 exec, s[70:71]")
    if 'sel' in abl:
        a(f"v_lshrrev_b32 v92, 6, v{V_TID}")
        a(f"v_and_b32 v93, 31, v{V_TID}")
        a(f"v_bfe_u32 v94, v{V_TID}, 5, 1")
        a("v_lshlrev_b32 v92, 3, v92")
        a("v_lshl_add_u32 v92, v94, 2, v92")
        a("v_sub_u32 v93, v93, v92")
        a("v_mov_b32 v95, 0x3f80")
        for q in range(4):
            a(f"v_cmp_eq_u32 vcc, {q}, v93")
            a(f"v_cndmask_b32 v{24+q}, 0, v95, vcc")
        a(f"v_add_u32 v92, {L_SEL}, v121")
        a(f"v_cmp_gt_u32 vcc, 256, v{V_TID}")
        a("s_and_saveexec_b64 s[70:71], vcc")
        a("ds_write_b128 v92, v[24:27]")
        a("s_mov_b64 exec, s[70:71]")
    stamp(11)
    a("s_waitcnt lgkmcnt(0)")
    sb_arrive(0, 36)
    sb_wait(0, 36)
    a("s_waitcnt vmcnt(0)")
    a("s_branch K2_B1")
    a.label("K2_GW")
    srd(a,28,4,N*512)
    srd(a,48,14,529*512)
    a(f"s_sub_u32 s67, s{S_WAVE}, 8")
    a("s_mul_i32 s55, s67, 5")
    a("s_mul_i32 s14, s2, 40")
    for j in range(3):
        a(f"s_add_u32 s68, s55, {2*j}")
        a(f"v_add_u32 v8, s68, v{V_TB}")
        a("v_and_b32 v9, 15, v8")
        a(f"v_xor_b32 v9, v9, v{V_TA}")
        a("v_lshlrev_b32 v9, 4, v9")
        a(f"v_lshl_or_b32 v9, v{V_TB}, 9, v9")
        a("s_add_u32 s56, s14, s68")
        a("s_lshl_b32 s56, s56, 9")
        a("s_lshl_b32 s57, s68, 9")
        a(f"s_add_u32 m0, s57, {L_HT}")
        if j==2: a("s_mov_b64 exec, 0xffffffff")
        a("buffer_load_dwordx4 v9, s[28:31], s56 offen lds")
        if j==2: a("s_mov_b64 exec, -1")
    a("s_lshl_b32 s56, s67, 10")
    a(f"s_add_u32 m0, s56, {L_W3}")
    a(f"s_add_u32 s56, s56, {IMG_W3}")
    a(f"buffer_load_dwordx4 v{V_TMP2}, s[40:43], s56 offen lds")
    srd(a,72,16,512)
    a(f"v_subrev_u32 v120, 512, v{V_TID}")
    a("v_and_b32 v16, 0xc0, v120")
    a(f"v_lshl_add_u32 v16, v{V_TA}, 1, v16")
    a("v_bfe_u32 v17, v120, 5, 1")
    a("v_add_u32 v16, v16, v17")
    a("v_lshlrev_b32 v16, 1, v16")
    a("v_mov_b32 v18, 0x7ffffff0")
    a("v_cmp_gt_u32 vcc, 256, v120")
    a("v_cndmask_b32 v16, v18, v16, vcc")
    a(f"buffer_load_ushort v{V_PP}, v16, s[72:75], 0 offen")
    a("v_lshrrev_b32 v19, 6, v120")
    a("v_lshlrev_b32 v19, 7, v19")
    a("v_lshl_add_u32 v19, v17, 6, v19")
    a(f"v_lshrrev_b32 v18, 4, v{V_TA}")
    a("v_lshl_add_u32 v19, v18, 5, v19")
    a(f"v_bfe_u32 v18, v{V_TA}, 2, 1")
    a("v_lshl_add_u32 v19, v18, 4, v19")
    a(f"v_and_b32 v18, 3, v{V_TA}")
    a("v_lshl_add_u32 v19, v18, 1, v19")
    a(f"v_bfe_u32 v18, v{V_TA}, 3, 1")
    a("v_lshl_add_u32 v19, v18, 3, v19")
    a(f"v_add_u32 v{V_PP2}, {L_WXF}, v19")
    small_loads()
    a("s_mov_b32 s14, 0")
    WF=56
    a(f"s_lshl_b32 s13, s67, 14")
    a(f"s_add_u32 s13, s13, {IMG_W1}")
    a("s_add_u32 s12, s13, 8192")
    for ks in range(8):
        if ks==4:
            a("s_add_u32 s13, s13, 4096")
            a("s_add_u32 s12, s12, 4096")
        if 'now1' not in abl:
            a(f"buffer_load_dwordx4 {vr(WF+4*ks)}, v{V_TMP2}, s[40:43], s13 offen offset:{(ks%4)*1024}")
            a(f"buffer_load_dwordx4 {vr(WF+32+4*ks)}, v{V_TMP2}, s[40:43], s12 offen offset:{(ks%4)*1024}")
    stamp(11)
    a("s_waitcnt vmcnt(%d)"%(2 if "now1" in abl else 18))
    sb_arrive(1, 8)
    sb_wait(1, 8)
    stamp(1)
    a(f"v_and_b32 v{V_TA}, 15, v{V_LANE}")
    a(f"v_lshrrev_b32 v{V_TB}, 4, v{V_LANE}")
    a(f"v_xor_b32 v120, v{V_TA}, v{V_TB}")
    a("v_lshlrev_b32 v120, 4, v120")
    a(f"v_lshl_add_u32 v120, v{V_TA}, 9, v120")
    a(f"v_add_u32 v120, {L_HT}, v120")
    AC=8; AF=32
    def rdh(ks):
        a(f"v_xor_b32 v121, {ks<<6}, v120")
        for rt in range(3): a(f"ds_read_b128 {vr(AF+12*(ks%2)+4*rt)}, v121 offset:{rt*8192}")
    rdh(0)
    for ks in range(8):
        if ks<7:
            rdh(ks+1); a(f"s_waitcnt vmcnt({14-2*ks}) lgkmcnt(3)")
        else: a("s_waitcnt vmcnt(0) lgkmcnt(0)")
        for c in range(2):
            for rt in range(3):
                acc=AC+12*c+4*rt
                cc='0' if ks==0 else vr(acc)
                a(f"v_mfma_f32_16x16x32_bf16 {vr(acc)}, {vr(AF+12*(ks%2)+4*rt)}, {vr(WF+32*c+4*ks)}, {cc}")
    a(f"s_sub_u32 s67, s{S_WAVE}, 8")
    a("s_lshl_b32 s55, s67, 5")
    a(f"v_add_u32 v121, s55, v{V_TA}")
    a("v_mul_u32_u24 v121, 80, v121")
    a(f"v_lshl_add_u32 v121, v{V_TB}, 3, v121")
    a(f"v_add_u32 v121, {L_AT}, v121")
    a(f"s_mov_b32 s55, {f2u(-LOG2E)}")
    for c in range(2):
        for rt in range(3):
            acc=AC+12*c+4*rt
            for r in range(4): a(f"v_mul_f32 v{acc+r}, s55, v{acc+r}")
            o=32+2*(3*c+rt)
            a(f"v_cvt_pk_bf16_f32 v{o}, v{acc}, v{acc+1}")
            a(f"v_cvt_pk_bf16_f32 v{o+1}, v{acc+2}, v{acc+3}")
            if rt==2: a("s_mov_b64 exec, 0xffffffff")
            a(f"ds_write_b64 v121, v[{o}:{o+1}] offset:{rt*32+c*16*80}")
            if rt==2: a("s_mov_b64 exec, -1")
    a("s_waitcnt vmcnt(0)")
    a(f"v_subrev_u32 v120, 512, v{V_TID}")
    a("v_cmp_gt_u32 vcc, 256, v120")
    a("s_and_saveexec_b64 s[70:71], vcc")
    a(f"ds_write_b16 v{V_PP2}, v{V_PP}")
    a("s_mov_b64 exec, s[70:71]")
    stamp(2)
    sb_wait(2, 36)
    stamp(3)
    a("s_branch K2_SCAN")
    a.label("K2_B1")
    stamp(1)
    a("v_max_u32 v118, v116, v117")
    a("v_cmp_lt_u32 vcc, 32, v118")
    a("s_and_saveexec_b64 s[70:71], vcc")
    a("s_cbranch_execz K2_NOOV2")
    for hv,add in ((116,0),(117,32)):
        a(f"v_lshrrev_b32 v119, 4, v{V_TID}")
        if add: a(f"v_add_u32 v119, {add}, v119")
        a(f"v_cmp_lt_u32 vcc, 32, v{hv}")
        a("v_cndmask_b32 v120, 0, 1, vcc")
        a("v_mov_b32 v121, 0")
        a("v_lshlrev_b64 v[120:121], v119, v[120:121]")
        a(f"v_mov_b32 v119, {L_OVM}")
        a("ds_or_b64 v119, v[120:121]")
    a.label("K2_NOOV2")
    a("s_mov_b64 exec, s[70:71]")
    stamp(2)
    a.label("K2_BATCH")
    a(f"s_cmp_ge_u32 s{S_WAVE}, 8")
    a("s_cbranch_scc1 K2_RANKED")
    a("v_mov_b32 v119, 1")
    for k,(rec,val) in enumerate(RECS):
        a(f"v_bfe_u32 v{DL(k)}, v{rec}, 24, 6")
        a(f"v_lshlrev_b32 v{CA(k)}, 2, v{DL(k)}")
        a(f"v_add_u32 v118, {L_CNT}, v{CA(k)}")
        a(f"s_mov_b64 exec, s[{val}:{val+1}]")
        a(f"ds_add_rtn_u32 v{RK(k)}, v118, v119")
        a("s_mov_b64 exec, -1")
    a(f"s_cmp_eq_u32 s{S_FIRST}, 0")
    a("s_cbranch_scc1 K2_RANKED")
    small_loads()
    a("s_waitcnt lgkmcnt(0)")
    sb_arrive(2, 36)
    sb_wait(2, 36)
    stamp(3)
    a("s_branch K2_SCAN")
    a.label("K2_RANKED")
    a("s_waitcnt lgkmcnt(0)")
    a("s_barrier")
    a.label("K2_SCAN")
    a(f"v_lshlrev_b32 v36, 2, v{V_LANE}")
    a(f"v_add_u32 v36, {L_CNT}, v36")
    a("ds_read_b32 v37, v36")
    a(f"v_mov_b32 v38, {L_OVM}")
    a("ds_read_b64 v[38:39], v38")
    a(f"v_cmp_gt_u32 vcc, 40, v{V_LANE}")
    a("s_waitcnt lgkmcnt(0)")
    a("v_cndmask_b32 v37, 0, v37, vcc")
    a("v_mov_b32 v40, v37")
    for sh in (1,2,4,8):
        a(f"v_add_u32_dpp v40, v40, v40 row_shr:{sh} row_mask:0xf bank_mask:0xf bound_ctrl:0")
    a("v_add_u32_dpp v40, v40, v40 row_bcast:15 row_mask:0xa bank_mask:0xf")
    a("v_add_u32_dpp v40, v40, v40 row_bcast:31 row_mask:0xc bank_mask:0xf")
    a("v_sub_u32 v41, v40, v37")
    a(f"s_cmp_eq_u32 s{S_FIRST}, 0")
    a("s_cbranch_scc1 K2_NOMASK")
    a(f"v_readfirstlane_b32 s{S_OVM}, v38")
    a(f"v_readfirstlane_b32 s{S_OVM+1}, v39")
    a.label("K2_NOMASK")
    for g in range(4): a(f"v_readlane_b32 s{S_G1+g}, v41, {8*(g+1)}")
    a(f"v_readlane_b32 s{S_N}, v40, 39")
    a("v_and_b32 v42, -32, v41")
    a(f"v_cmp_le_u32 vcc, s{S_G1}, v42")
    a(f"v_cndmask_b32 v43, 0, 1, vcc")
    for g in range(1,4):
        a(f"v_cmp_le_u32 vcc, s{S_G1+g}, v42")
        a(f"v_addc_co_u32 v43, vcc, 0, v43, vcc")
    a("v_lshlrev_b32 v43, 3, v43")
    a(f"v_sub_u32 v43, v{V_LANE}, v43")
    a("v_cmp_lt_i32 vcc, 14, v43")
    a("v_cmp_lt_u32 s[70:71], 0, v37")
    a("s_and_b64 vcc, vcc, s[70:71]")
    a("s_cbranch_vccz K2_DENSE")
    AG=[None,97,98,99,100]
    a(f"s_add_u32 s97, s{S_G1}, 31")
    a("s_and_b32 s97, s97, -32")
    for g in range(2,5):
        a(f"s_sub_u32 s{AG[g]}, s{S_G1+g-1}, s{S_G1+g-2}")
        a(f"s_add_u32 s{AG[g]}, s{AG[g]}, 31")
        a(f"s_and_b32 s{AG[g]}, s{AG[g]}, -32")
        a(f"s_add_u32 s{AG[g]}, s{AG[g]}, s{AG[g-1]}")
    a(f"s_sub_u32 s{S_N}, s{S_N}, s{S_G1+3}")
    a(f"s_add_u32 s{S_N}, s{S_N}, s100")
    for g in range(1,5):
        a(f"s_sub_u32 s69, s{AG[g]}, s{S_G1+g-1}")
        a(f"v_mov_b32 v42, s69")
        a(f"v_cmp_le_u32 vcc, {8*g}, v{V_LANE}")
        if g==1: a(f"v_cndmask_b32 v43, 0, v42, vcc")
        else:    a(f"v_cndmask_b32 v43, v43, v42, vcc")
    a("v_add_u32 v41, v41, v43")
    a(f"v_and_b32 v43, 7, v{V_LANE}")
    for g in range(1,5): a(f"s_mov_b32 s{S_G1+g-1}, s{AG[g]}")
    a.label("K2_DENSE")
    a(f"s_add_u32 s{S_T}, s{S_N}, 31")
    a(f"s_lshr_b32 s{S_T}, s{S_T}, 5")
    a(f"s_mov_b32 s{S_RB}, 0")
    a(f"s_cmp_ge_u32 s{S_WAVE}, 8")
    a("s_cbranch_scc1 K2_GW2")
    a("v_and_b32 v43, 15, v43")
    a("v_lshl_or_b32 v41, v43, 16, v41")
    for k in range(4): a(f"ds_bpermute_b32 v{24+k}, v{CA(k)}, v41")
    a("s_waitcnt lgkmcnt(0)")
    for k in range(4):
        a(f"v_and_b32 v36, 0xffff, v{24+k}")
        a(f"v_add_u32 v{RK(k)}, v36, v{RK(k)}")
        a(f"v_xor_b32 v36, v36, v{RK(k)}")
        a(f"v_lshrrev_b32 v{RL(k)}, 16, v{24+k}")
        a(f"v_and_b32 v37, 7, v{DL(k)}")
        a(f"v_cmp_gt_u32 vcc, 32, v36")
        a(f"v_cndmask_b32 v{RL(k)}, v37, v{RL(k)}, vcc")
        a(f"v_and_b32 v{RK(k)}, 0xfff, v{RK(k)}")
    for pp,(k0,k1_) in ((V_PP,(0,1)),(V_PP2,(2,3))):
        a(f"v_lshl_or_b32 v{pp}, v{RL(k0)}, 12, v{RK(k0)}")
        a(f"v_lshl_or_b32 v36, v{RL(k1_)}, 12, v{RK(k1_)}")
        a(f"v_lshl_or_b32 v{pp}, v36, 16, v{pp}")
    stamp(4)
    a(f"s_cmp_lg_u32 s{S_FIRST}, 0")
    a("s_cbranch_scc1 K2_CLEAN")
    a("s_branch K2_ROUND")
    a.label("K2_GW2")
    a(f"s_cmp_eq_u32 s{S_FIRST}, 0")
    a("s_cbranch_scc1 K2_ROUND")
    a("s_branch K2_WDONE")
    a.label("K2_ROUND")
    lane_tid()
    a(f"s_cmp_ge_u32 s{S_WAVE}, 8")
    a("s_cbranch_scc1 K2_RND2")
    load_recs(True)
    zero512(L_S2, L_S2+(TCAP+4)*2048, 24)
    pad512(24)
    a("s_waitcnt vmcnt(0) lgkmcnt(0)")
    for k,(rec,val) in enumerate(RECS):
        pp=V_PP if k<2 else V_PP2
        sh=16*(k%2)
        a(f"v_bfe_u32 v{DL(k)}, v{rec}, 24, 6")
        a(f"v_bfe_u32 v{RK(k)}, v{pp}, {sh}, 12")
        a(f"v_bfe_u32 v{RL(k)}, v{pp}, {sh+12}, 4")
    a.label("K2_RND2")
    a("s_barrier")
    a(f"s_cmp_ge_u32 s{S_WAVE}, 8")
    a("s_cbranch_scc1 K2_WDONE")
    def tile_range():
        a(f"s_sub_u32 s55, s{S_T}, s{S_RB}")
        a(f"s_min_u32 s55, s55, {TCAP}")
        a(f"s_add_u32 s{S_PER}, s55, 3")
        a(f"s_lshr_b32 s{S_PER}, s{S_PER}, 2")
        a(f"s_mul_i32 s{S_TL}, s{S_PER}, s{S_SUB}")
        a(f"s_add_u32 s{S_TE}, s{S_TL}, s{S_PER}")
        a(f"s_min_u32 s{S_TE}, s{S_TE}, s55")
        a(f"s_min_u32 s{S_TL}, s{S_TL}, s55")
        a(f"s_add_u32 s55, s{S_RB}, {TCAP}")
        a(f"s_cmp_ge_u32 s55, s{S_T}")
        a(f"s_cselect_b32 s{S_PRE}, 1, 0")
        a(f"s_cmp_eq_u64 s[{S_OVM}:{S_OVM+1}], 0")
        a(f"s_cselect_b32 s{S_PRE}, s{S_PRE}, 0")
        a(f"s_lshl_b32 s55, s{S_OCH}, 11")
        a(f"s_cmp_ge_u32 s55, s{S_OCN}")
        a(f"s_cselect_b32 s{S_PRE}, s{S_PRE}, 0")
    def issue_loads(tll):
        a(f"s_lshl_b32 s67, s{tll}, 7")
        a(f"s_add_u32 s68, s67, {L_OFF}")
        a(f"v_lshl_add_u32 v{V_TA}, v{V_HH16}, 2, s68")
        for q in range(4): a(f"ds_read_b128 {vr(G+4*q)}, v{V_TA} offset:{16*q}")
        a(f"s_lshl_b32 s68, s{tll}, 8")
        a(f"v_add_u32 v{V_TB}, s68, v{V_EIA}")
        a(f"ds_read_b64 v[{V_TA}:{V_TB}], v{V_TB}")
    def issue_loads2():
        for q in range(8):
            a(f"v_pk_add_f32 v[{G+2*q}:{G+2*q+1}], v[{G+2*q}:{G+2*q+1}], v[{V_LOFF}:{V_LOFF+1}] op_sel_hi:[1,0]")
        a(f"v_add_u32 v{V_TA}, v{V_TA}, v{V_HH16}")
        a(f"v_mov_b32 v{V_INF}, v{V_TB}")
        if 'noea' not in abl: a(f"buffer_load_dwordx4 {vr(X1)}, v{V_TA}, s[32:35], 0 offen")
        if 'noload' not in abl:
            GF=(' nt' if 'g_nt' in abl else '')+(' sc1' if 'g_sc1' in abl else '')+(' sc0' if 'g_sc0' in abl else '')
            for r in range(16): a(f"buffer_load_dword v{G+r}, v{G+r}, s[36:39], 0 offen"+GF)
    a.label("K2_CLEAN")
    a("s_mov_b32 s67, 0x7ffe00")
    a("s_mov_b32 s68, 0xffff0000")
    a(f"s_lshl_b32 s69, s{S_RB}, 5")
    def write_rec(rec, dl, pos, rel, valid, tag):
        w0,w1_,W2,W3=rec,rec+1,rec+2,rec+3
        Pp,AD,A2,VAL,INF,SL,ONE,DLT=24,25,26,28,29,30,31,32
        a(f"v_subrev_u32 v{Pp}, s69, v{pos}")
        a(f"v_cmp_gt_u32 vcc, {TCAP*32}, v{Pp}")
        a(f"s_and_b64 vcc, vcc, s[{valid}:{valid+1}]")
        a("s_and_saveexec_b64 s[70:71], vcc")
        a(f"s_cbranch_execz K2_WR{tag}")
        a(f"v_lshlrev_b32 v{AD}, 2, v{Pp}")
        a(f"v_and_b32 v{A2}, s67, v{w0}")
        a(f"v_add_u32 v{AD}, {L_OFF}, v{AD}")
        a(f"ds_write_b32 v{AD}, v{A2}")
        a(f"v_lshlrev_b32 v{A2}, 5, v{rel}")
        a(f"v_and_or_b32 v{INF}, v{W3}, s68, v{A2}")
        a(f"v_mov_b32 v{VAL}, v{w1_}")
        a(f"v_lshlrev_b32 v{AD}, 3, v{Pp}")
        a(f"v_add_u32 v{AD}, {L_EI}, v{AD}")
        a(f"ds_write_b64 v{AD}, v[{VAL}:{INF}]")
        a(f"v_lshrrev_b32 v{AD}, 3, v{Pp}")
        a(f"v_lshlrev_b32 v{AD}, 9, v{AD}")
        a(f"v_and_b32 v{A2}, 7, v{Pp}")
        a(f"v_lshl_add_u32 v{AD}, v{A2}, 1, v{AD}")
        a(f"v_and_b32 v{SL}, 7, v{rel}")
        a(f"v_lshl_add_u32 v{AD}, v{SL}, 6, v{AD}")
        a(f"v_lshrrev_b32 v{DLT}, 3, v{dl}")
        a(f"v_lshrrev_b32 v{A2}, 5, v{Pp}")
        a(f"v_sub_u32 v{DLT}, v{DLT}, v{A2}")
        a(f"v_add_u32 v{DLT}, {TCAP-1}, v{DLT}")
        a(f"v_lshlrev_b32 v{DLT}, 11, v{DLT}")
        a(f"v_cmp_lt_u32 vcc, 7, v{rel}")
        a(f"v_cndmask_b32 v{DLT}, 0, v{DLT}, vcc")
        a(f"v_add_u32 v{AD}, v{AD}, v{DLT}")
        a(f"v_mov_b32 v{ONE}, 0x3f80")
        a(f"ds_write_b16 v{AD}, v{ONE} offset:{L_S2}")
        a(f"ds_write_b16 v{AD}, v{W2} offset:{L_S2+16}")
        a(f"ds_write_b16_d16_hi v{AD}, v{W2} offset:{L_S2+32}")
        a(f"ds_write_b16 v{AD}, v{W3} offset:{L_S2+48}")
        a.label(f"K2_WR{tag}")
        a("s_mov_b64 exec, s[70:71]")
    for k,(rec,val) in enumerate(RECS): write_rec(rec,DL(k),RK(k),RL(k),val,"ABCD"[k])
    if 'noearly' not in abl:
        a(f"s_cmp_eq_u32 s{S_FIRST}, 0")
        a("s_cbranch_scc1 K2_WDONE")
        a("s_waitcnt lgkmcnt(0)")
        sb_arrive(3, 36)
        sb_wait(3, 36)
        tile_range()
        a(f"s_cmp_ge_u32 s{S_TL}, s{S_TE}")
        a("s_cbranch_scc1 K2_WDONE")
        a("s_waitcnt vmcnt(0)")
        issue_loads(S_TL)
        a("s_waitcnt lgkmcnt(0)")
        issue_loads2()
        a("s_mov_b32 s14, 1")
        a(f"s_mov_b32 s55, {f2u(-LOG2E)}")
        a(f"v_lshlrev_b32 v36, 16, v{V_WD}")
        a(f"v_and_b32 v37, 0xffff0000, v{V_WD}")
        a("v_mul_f32 v36, s55, v36")
        a("v_mul_f32 v37, s55, v37")
        a(f"v_cvt_pk_bf16_f32 v{V_WD}, v36, v37")
        a("s_branch K2_NOWX")
    a.label("K2_WDONE")
    a(f"s_cmp_eq_u32 s{S_FIRST}, 0")
    a("s_cbranch_scc1 K2_NOWX")
    a("s_waitcnt vmcnt(0)")
    a(f"s_mov_b32 s55, {f2u(-LOG2E)}")
    a(f"v_lshlrev_b32 v36, 16, v{V_WD}")
    a(f"v_and_b32 v37, 0xffff0000, v{V_WD}")
    a("v_mul_f32 v36, s55, v36")
    a("v_mul_f32 v37, s55, v37")
    a(f"v_cvt_pk_bf16_f32 v{V_WD}, v36, v37")
    a.label("K2_NOWX")
    a("s_waitcnt lgkmcnt(0)")
    a("s_barrier")
    stamp(5)
    a(f"s_cmp_eq_u32 s{S_FIRST}, 0")
    a("s_cbranch_scc1 K2_NOW3")
    a(f"s_lshl_b32 s55, s{S_W}, 11")
    a(f"s_add_u32 s55, s55, {L_W3}")
    a(f"v_add_u32 v36, s55, v{V_TMP2}")
    a(f"ds_read_b128 {vr(W3L)}, v36")
    a(f"ds_read_b128 {vr(W3H)}, v36 offset:1024")
    a.label("K2_NOW3")
    tile_range()
    F1=[G,G+4,G+8,G+12,W3L,W3H,ATL,ATH]
    F2=[L+4*i for i in range(8)]
    def load_f(regs, img, l16):
        a(f"s_lshl_b32 s67, s{S_WAVE}, 13")
        a(f"s_add_u32 s67, s67, {img}")
        for ks in range(8):
            if ks==4: a("s_add_u32 s67, s67, 4096")
            if 'nowh' not in abl: a(f"buffer_load_dwordx4 {vr(regs[ks])}, v{l16}, s[40:43], s67 offen offset:{(ks%4)*1024}"+(' nt' if 'w_nt' in abl else ''))
    a(f"s_mov_b32 s{S_CUR}, -1")
    a(f"s_mov_b32 s{S_ATG}, -1")
    a(f"s_mov_b32 s{S_CONT}, -1")
    a(f"s_mov_b32 s15, 0")
    a(f"s_cmp_ge_u32 s{S_TL}, s{S_TE}")
    a("s_cbranch_scc1 K2_LOOPEND")
    a(f"s_mov_b32 s13, s{S_TL}")
    a("s_setprio 3")
    a("s_cmp_eq_u32 s14, 1")
    a("s_cbranch_scc1 K2_HAVE1")
    issue_loads(S_TL)
    a("s_waitcnt lgkmcnt(0)")
    issue_loads2()
    a.label("K2_HAVE1")
    a("s_mov_b32 s14, 0")
    stamp(6)
    a(f"s_add_u32 s55, s{S_TL}, s{S_RB}")
    a("s_lshl_b32 s55, s55, 5")
    a("s_mov_b32 s67, 0")
    a("s_mov_b32 s68, 0")
    for g in range(4):
        a(f"s_cmp_ge_u32 s55, s{S_G1+g}")
        a(f"s_cselect_b32 s68, s{S_G1+g}, s68")
        a(f"s_addc_u32 s67, s67, 0")
    a("s_cmp_lt_u32 s68, s55")
    a(f"s_cselect_b32 s{S_CONT}, s67, -1")
    a(f"s_cmp_eq_u32 s{S_SUB}, 0")
    a(f"s_cselect_b32 s{S_CONT}, -1, s{S_CONT}")
    fl=[0]
    def flush(final=False):
        fl[0]+=1; tg=f"F{fl[0]}"
        a(f"s_lshl_b32 s67, s{S_W}, 7")
        a(f"s_add_u32 s67, s67, {L_WXF}")
        a(f"v_add_u32 v{V_TA}, s67, v{V_HH16}")
        WX=[T,T+4,X2,S2A] if final else [L+8,L+12,H+8,H+12]
        TT=V_TB if final else T
        for i in range(4): a(f"ds_read_b128 {vr(WX[i])}, v{V_TA} offset:{32*i}")
        a(f"s_lshl_b32 s67, s{S_CUR}, 3")
        a(f"s_mov_b32 s68, s{S_CUR}")
        a(f"s_cmp_eq_u32 s{S_CUR}, s{S_CONT}")
        a(f"s_cbranch_scc0 K2_{tg}A")
        a(f"s_cmp_eq_u32 s{S_FIRST}, 0")
        a(f"s_cbranch_scc1 K2_{tg}A")
        a(f"s_lshl_b32 s67, s{S_SUB}, 3")
        a("s_add_u32 s67, s67, 32")
        a(f"s_add_u32 s68, s{S_SUB}, 4")
        a.label(f"K2_{tg}A")
        a(f"s_mul_i32 s67, s67, {MI_STR}")
        a(f"s_lshl_b32 s69, s{S_W}, 7")
        a("s_add_u32 s67, s67, s69")
        a(f"s_add_u32 s67, s67, {L_MI}")
        a(f"v_bfe_u32 v{V_TA}, v{V_LOFF}, 4, 3")
        a(f"v_mul_u32_u24 v{V_TA}, {MI_STR}, v{V_TA}")
        a(f"v_lshrrev_b32 v{TT}, 1, v{V_HH16}")
        a(f"v_add3_u32 v{V_TA}, v{V_TA}, v{TT}, s67")
        for q in range(8): a(f"v_cvt_pk_bf16_f32 v{D2L+q}, v{D2L+2*q}, v{D2L+2*q+1}")
        for q in range(7,-1,-1): a(f"v_cvt_pk_bf16_f32 v{D2H+8+q}, v{D2H+2*q}, v{D2H+2*q+1}")
        D3=D2L+8
        a("s_waitcnt lgkmcnt(0)")
        a(f"v_mfma_f32_32x32x16_bf16 {vr(D3,16)}, {vr(WX[0])}, {vr(D2L)}, 0")
        a(f"v_mfma_f32_32x32x16_bf16 {vr(D3,16)}, {vr(WX[1])}, {vr(D2L+4)}, {vr(D3,16)}")
        a(f"v_mfma_f32_32x32x16_bf16 {vr(D3,16)}, {vr(WX[2])}, {vr(D2H+8)}, {vr(D3,16)}")
        a(f"v_mfma_f32_32x32x16_bf16 {vr(D3,16)}, {vr(WX[3])}, {vr(D2H+12)}, {vr(D3,16)}")
        a("s_mov_b32 exec_lo, 0x11111111")
        a("s_mov_b32 exec_hi, 0x11111111")
        a(f"s_cmp_eq_u32 s{S_FIRST}, 0")
        a(f"s_cbranch_scc1 K2_{tg}B")
        for q in range(0,8,2):
            i=8*((2*q)>>2)
            a(f"ds_write_b64 v{V_TA}, v[{D2L+q}:{D2L+q+1}] offset:{2*i}")
            a(f"ds_write_b64 v{V_TA}, v[{D2H+8+q}:{D2H+8+q+1}] offset:{64+2*i}")
        a(f"s_branch K2_{tg}C")
        a.label(f"K2_{tg}B")
        for q in range(8):
            i=((2*q)&3)+8*((2*q)>>2)
            a(f"ds_pk_add_bf16 v{V_TA}, v{D2L+q} offset:{2*i}")
            a(f"ds_pk_add_bf16 v{V_TA}, v{D2H+8+q} offset:{64+2*i}")
        a.label(f"K2_{tg}C")
        a(f"s_lshl_b32 s67, s68, 7")
        a(f"s_mul_i32 s69, s{S_W}, {1024-128}")
        a("s_add_u32 s67, s67, s69")
        a(f"s_add_u32 s67, s67, {L_POS}")
        a("s_mov_b64 exec, 0xffffffff")
        a(f"v_add_u32 v{TT}, s67, v{V_LOFF}")
        a(f"s_cmp_eq_u32 s{S_FIRST}, 0")
        a(f"s_cbranch_scc1 K2_{tg}D")
        a(f"ds_write_b32 v{TT}, v{D3}")
        a(f"s_branch K2_{tg}E")
        a.label(f"K2_{tg}D")
        a(f"ds_add_f32 v{TT}, v{D3}")
        a.label(f"K2_{tg}E")
        a("s_mov_b64 exec, -1")
    a.label("K2_LOOP")
    if 'noprio' not in abl:
        if 'remprio' in abl:
            a(f"s_sub_u32 s55, s{S_TE}, s{S_TL}")
            a("s_cmp_ge_u32 s55, 4")
            a("s_cbranch_scc1 K2_P3")
            a("s_cmp_eq_u32 s55, 3")
            a("s_cbranch_scc1 K2_P2")
            a("s_cmp_eq_u32 s55, 2")
            a("s_cbranch_scc1 K2_P1")
        else:
            a(f"s_sub_u32 s55, s{S_TL}, s13")
            a("s_cmp_eq_u32 s55, 0")
            a("s_cbranch_scc1 K2_P3")
            a("s_cmp_eq_u32 s55, 1")
            a("s_cbranch_scc1 K2_P2")
            a("s_cmp_eq_u32 s55, 2")
            a("s_cbranch_scc1 K2_P1")
        a("s_setprio 0")
        a("s_branch K2_PD")
        a.label("K2_P1")
        a("s_setprio 1")
        a("s_branch K2_PD")
        a.label("K2_P2")
        a("s_setprio 2")
        a("s_branch K2_PD")
        a.label("K2_P3")
        a("s_setprio 3")
        a.label("K2_PD")
    a(f"s_add_u32 s55, s{S_TL}, s{S_RB}")
    a("s_lshl_b32 s55, s55, 5")
    a(f"s_mov_b32 s{S_GB}, 0")
    for g in range(4):
        a(f"s_cmp_ge_u32 s55, s{S_G1+g}")
        a(f"s_addc_u32 s{S_GB}, s{S_GB}, 0")
    a("s_add_u32 s55, s55, 31")
    a(f"s_sub_u32 s67, s{S_N}, 1")
    a("s_min_u32 s55, s55, s67")
    a(f"s_mov_b32 s{S_STR}, 0")
    for g in range(4):
        a(f"s_cmp_ge_u32 s55, s{S_G1+g}")
        a(f"s_addc_u32 s{S_STR}, s{S_STR}, 0")
    a(f"s_sub_u32 s{S_STR}, s{S_STR}, s{S_GB}")
    a("s_movk_i32 s67, 0x1e0")
    a(f"v_and_or_b32 v{V_TA}, v{V_INF}, s67, v{V_HH16}")
    a(f"ds_read_b128 {vr(X2)}, v{V_TA}")
    if 'sel' in abl:
        a(f"s_movk_i32 s67, {L_S2-L_SEL}")
        a(f"v_lshl_add_u32 v{V_TB}, v{V_HH16}, 5, s67")
        a(f"v_sub_u32 v{V_TB}, v{V_S2A}, v{V_TB}")
        for q in range(4): a(f"ds_read_b128 {vr(H+4*q)}, v{V_TB} offset:{q*1024}")
    a(f"s_cmp_eq_u32 s{S_GB}, s{S_ATG}")
    a("s_cbranch_scc1 K2_ATOK")
    a(f"s_lshl_b32 s67, s{S_GB}, 4")
    a(f"s_mul_i32 s68, s{S_W}, 2560")
    a("s_add_u32 s67, s67, s68")
    a(f"s_add_u32 s67, s67, {L_AT}")
    a(f"v_mul_u32_u24 v{V_TA}, 20, v{V_LOFF}")
    a(f"v_add3_u32 v{V_TA}, v{V_TA}, v{V_HH16}, s67")
    a(f"ds_read_b128 {vr(ATL)}, v{V_TA}")
    a(f"ds_read_b128 {vr(ATH)}, v{V_TA} offset:{32*80}")
    a(f"s_mov_b32 s{S_ATG}, s{S_GB}")
    a("s_mov_b32 s67, 0x05040100")
    a("s_mov_b32 s68, 0x07060100")
    a("s_waitcnt lgkmcnt(0)")
    a("s_mov_b32 exec_lo, 0")
    a(f"v_perm_b32 v{ATL+3}, v{V_WD}, v{ATL+3}, s67")
    a(f"v_perm_b32 v{ATH+3}, v{V_WD}, v{ATH+3}, s68")
    a("s_mov_b64 exec, -1")
    a.label("K2_ATOK")
    if 'sel' not in abl:
        a("s_waitcnt vmcnt(0)")
        for r in range(16): a(f"v_lshlrev_b32 v{L+r}, 16, v{G+r}")
        a("s_waitcnt lgkmcnt(0)")
        a("s_mov_b32 s67, 0xffff0000")
        a("s_mov_b32 exec_lo, 0")
        a(f"v_and_or_b32 v{X2+3}, v{V_INF}, s67, v{X2+3}")
        a("s_mov_b64 exec, -1")
        a(f"v_mfma_f32_32x32x16_bf16 {vr(H,16)}, {vr(X1)}, {vr(W3H)}, {vr(G,16)}")
        a(f"v_mfma_f32_32x32x16_bf16 {vr(L,16)}, {vr(X1)}, {vr(W3L)}, {vr(L,16)}")
        a(f"v_mfma_f32_32x32x16_bf16 {vr(H,16)}, {vr(X2)}, {vr(ATH)}, {vr(H,16)}")
        a(f"v_mfma_f32_32x32x16_bf16 {vr(L,16)}, {vr(X2)}, {vr(ATL)}, {vr(L,16)}")
    else:
        a("s_waitcnt lgkmcnt(0)")
        a("s_mov_b32 s67, 0xffff0000")
        a("s_mov_b32 exec_lo, 0")
        a(f"v_and_or_b32 v{X2+3}, v{V_INF}, s67, v{X2+3}")
        a("s_mov_b64 exec, -1")
        a("s_waitcnt vmcnt(0)")
        a(f"v_mfma_f32_32x32x16_bf16 {vr(L,16)}, {vr(H)}, {vr(G)}, 0")
        a(f"v_mfma_f32_32x32x16_bf16 {vr(L,16)}, {vr(H+4)}, {vr(G+4)}, {vr(L,16)}")
        a(f"v_mfma_f32_32x32x16_bf16 {vr(L,16)}, {vr(H+8)}, {vr(G+8)}, {vr(L,16)}")
        a(f"v_mfma_f32_32x32x16_bf16 {vr(L,16)}, {vr(H+12)}, {vr(G+12)}, {vr(L,16)}")
        a(f"v_mfma_f32_32x32x16_bf16 {vr(H,16)}, {vr(X1)}, {vr(W3H)}, {vr(G,16)}")
        a(f"v_mfma_f32_32x32x16_bf16 {vr(H,16)}, {vr(X2)}, {vr(ATH)}, {vr(H,16)}")
        a(f"v_mfma_f32_32x32x16_bf16 {vr(L,16)}, {vr(X1)}, {vr(W3L)}, {vr(L,16)}")
        a(f"v_mfma_f32_32x32x16_bf16 {vr(L,16)}, {vr(X2)}, {vr(ATL)}, {vr(L,16)}")
    a(f"s_add_u32 s{S_NXT}, s{S_TL}, 1")
    a("s_nop 3")
    issue_loads(S_NXT)
    a(f"s_lshl_b32 s67, s{S_TL}, 11")
    a(f"v_add_u32 v{T+7}, s67, v{V_S2A}")
    a(f"ds_read_b128 {vr(S2A)}, v{T+7}")
    a(f"ds_read_b128 {vr(X2)}, v{T+7} offset:512")
    def nextloads():
        a(f"s_cmp_ge_u32 s{S_NXT}, s{S_TE}")
        a("s_cbranch_scc1 K2_NONEXT")
        a("s_waitcnt lgkmcnt(2)")
        issue_loads2()
        a("s_branch K2_NONEXT2")
        a.label("K2_NONEXT")
        a(f"s_cmp_eq_u32 s{S_PRE}, 0")
        a("s_cbranch_scc1 K2_NONEXT2")
        a("s_waitcnt lgkmcnt(2)")
        a(f"v_mbcnt_lo_u32_b32 v{V_TA}, -1, 0")
        a(f"v_mbcnt_hi_u32_b32 v{V_TA}, -1, v{V_TA}")
        a(f"v_lshlrev_b32 v{V_TA}, 4, v{V_TA}")
        load_f(F1, IMG_WH1, V_TA)
        a("s_mov_b32 s15, 1")
        a.label("K2_NONEXT2")
    def silu_blk(base, first):
        for c in range(2):
            y=base+8*c
            if 'notrans' not in abl:
                for j in range(8): a(f"v_exp_f32 v{T+j}, v{y+j}")
            for j in range(4): a(f"v_pk_add_f32 v[{T+2*j}:{T+2*j+1}], v[{T+2*j}:{T+2*j+1}], 1.0")
            if 'notrans' not in abl:
                for j in range(8): a(f"v_rcp_f32 v{T+j}, v{T+j}")
            for j in range(4): a(f"v_pk_mul_f32 v[{T+2*j}:{T+2*j+1}], v[{T+2*j}:{T+2*j+1}], v[{y+2*j}:{y+2*j+1}]")
            for j in range(4): a(f"v_cvt_pk_bf16_f32 v{base+4*c+j}, v{T+2*j}, v{T+2*j+1}")
            if first and c==0: nextloads()
    def silu(base, first):
        if 'blk' in abl: return silu_blk(base, first)
        tp=lambda p: T+(2*p)%8
        for p in range(8+3):
            if p<8:
                a(f"v_exp_f32 v{tp(p)}, v{base+2*p}")
                a(f"v_exp_f32 v{tp(p)+1}, v{base+2*p+1}")
            q=p-1
            if 0<=q<8:
                a(f"v_pk_add_f32 v[{tp(q)}:{tp(q)+1}], v[{tp(q)}:{tp(q)+1}], 1.0")
                a(f"v_rcp_f32 v{tp(q)}, v{tp(q)}")
                a(f"v_rcp_f32 v{tp(q)+1}, v{tp(q)+1}")
            q=p-2
            if 0<=q<8:
                a(f"v_pk_mul_f32 v[{tp(q)}:{tp(q)+1}], v[{tp(q)}:{tp(q)+1}], v[{base+2*q}:{base+2*q+1}]")
            q=p-3
            if 0<=q<8:
                a(f"v_cvt_pk_bf16_f32 v{base+q}, v{tp(q)}, v{tp(q)+1}")
            if first and p==NLP: nextloads()
    NLP = -1 if 'early' in abl else (7 if 'later' in abl else 4)
    if NLP<0 and 'blk' not in abl: nextloads()
    silu(H,True)
    silu(L,False)
    a(f"s_mov_b32 s{S_PG}, s{S_GB}")
    a.label("K2_PASS")
    a(f"s_cmp_eq_u32 s{S_PG}, s{S_CUR}")
    a("s_cbranch_scc1 K2_ACC")
    a(f"s_cmp_lt_i32 s{S_CUR}, 0")
    a("s_cbranch_scc1 K2_NOFL")
    flush()
    a.label("K2_NOFL")
    a(f"s_mov_b32 s{S_CUR}, s{S_PG}")
    a("s_waitcnt lgkmcnt(0)")
    a(f"v_mfma_f32_32x32x16_bf16 {vr(D2L,16)}, {vr(L)}, {vr(S2A)}, 0")
    a(f"v_mfma_f32_32x32x16_bf16 {vr(D2H,16)}, {vr(H)}, {vr(S2A)}, 0")
    a("s_branch K2_ACC2")
    a.label("K2_ACC")
    a("s_waitcnt lgkmcnt(0)")
    a(f"v_mfma_f32_32x32x16_bf16 {vr(D2L,16)}, {vr(L)}, {vr(S2A)}, {vr(D2L,16)}")
    a(f"v_mfma_f32_32x32x16_bf16 {vr(D2H,16)}, {vr(H)}, {vr(S2A)}, {vr(D2H,16)}")
    a.label("K2_ACC2")
    a(f"v_mfma_f32_32x32x16_bf16 {vr(D2L,16)}, {vr(L+4)}, {vr(X2)}, {vr(D2L,16)}")
    a(f"v_mfma_f32_32x32x16_bf16 {vr(D2H,16)}, {vr(H+4)}, {vr(X2)}, {vr(D2H,16)}")
    a(f"s_cmp_eq_u32 s{S_STR}, 0")
    a("s_cbranch_scc1 K2_NEXT")
    a(f"s_mov_b32 s{S_STR}, 0")
    a(f"s_add_u32 s{S_PG}, s{S_GB}, 1")
    a(f"s_add_u32 s67, s{S_GB}, {TCAP}")
    a("s_lshl_b32 s67, s67, 11")
    a(f"v_add_u32 v{T+7}, s67, v{V_S2A}")
    a("s_nop 7")
    a(f"ds_read_b128 {vr(S2A)}, v{T+7}")
    a(f"ds_read_b128 {vr(X2)}, v{T+7} offset:512")
    a("s_branch K2_PASS")
    a.label("K2_NEXT")
    a(f"s_add_u32 s{S_TL}, s{S_TL}, 1")
    a(f"s_cmp_lt_u32 s{S_TL}, s{S_TE}")
    a("s_cbranch_scc1 K2_LOOP")
    a("s_mov_b32 s14, 0")
    a(f"s_cmp_eq_u32 s{S_PRE}, 0")
    a("s_cbranch_scc1 K2_NOF2")
    a("s_nop 7")
    a(f"v_mbcnt_lo_u32_b32 v{V_TA}, -1, 0")
    a(f"v_mbcnt_hi_u32_b32 v{V_TA}, -1, v{V_TA}")
    a(f"v_lshlrev_b32 v{V_TA}, 4, v{V_TA}")
    load_f(F2, IMG_WH2, V_TA)
    a("s_mov_b32 s14, 2")
    a.label("K2_NOF2")
    a("s_nop 3")
    flush(True)
    a.label("K2_LOOPEND")
    a("s_setprio 0")
    stamp(7)
    a(f"s_cmp_eq_u32 s{S_FIRST}, 0")
    a("s_cbranch_scc1 K2_NOSAVE")
    for g in range(4): a(f"s_mov_b32 s{8+g}, s{S_G1+g}")
    a(f"s_mov_b32 s12, s{S_PER}")
    a.label("K2_NOSAVE")
    a(f"s_mov_b32 s{S_FIRST}, 0")
    a(f"s_cmp_lg_u32 s{S_PRE}, 0")
    a("s_cbranch_scc1 K2_EPI")
    a("s_waitcnt vmcnt(0) lgkmcnt(0)")
    a(f"s_add_u32 s{S_RB}, s{S_RB}, {TCAP}")
    a(f"s_cmp_lt_u32 s{S_RB}, s{S_T}")
    a("s_cbranch_scc0 K2_OVNEXT")
    a("s_barrier")
    a("s_branch K2_ROUND")
    a.label("K2_OVNEXT")
    a(f"s_lshl_b32 s55, s{S_OCH}, 11")
    a(f"s_cmp_lt_u32 s55, s{S_OCN}")
    a("s_cbranch_scc1 K2_OVGO")
    a(f"s_cmp_eq_u64 s[{S_OVM}:{S_OVM+1}], 0")
    a("s_cbranch_scc1 K2_EPI")
    a(f"s_ff1_i32_b64 s{S_OP}, s[{S_OVM}:{S_OVM+1}]")
    a(f"s_bitset0_b64 s[{S_OVM}:{S_OVM+1}], s{S_OP}")
    a(f"s_lshl_b32 s55, s{S_OP}, 2")
    a(f"s_add_u32 s55, s55, {WS_OVC}")
    a("v_mov_b32 v100, 0")
    a("buffer_load_dword v100, v100, s[40:43], s55 offen")
    a("s_waitcnt vmcnt(0)")
    a(f"v_readfirstlane_b32 s{S_OCN}, v100")
    a(f"s_min_u32 s{S_OCN}, s{S_OCN}, {EPP}")
    a(f"s_mov_b32 s{S_OCH}, 0")
    a("s_branch K2_OVNEXT")
    a.label("K2_OVGO")
    a("s_mov_b32 s69, s55")
    a("s_barrier")
    lane_tid()
    a(f"s_mul_i32 s{S_RB0}, s{S_OP}, 40000")
    a(f"s_add_u32 s{S_RB0}, s{S_RB0}, {WS_OVF}")
    a("s_lshl_b32 s67, s69, 4")
    a(f"s_add_u32 s{S_RB0}, s{S_RB0}, s67")
    a(f"s_add_u32 s{S_RB1}, s{S_RB0}, 16384")
    a(f"s_add_u32 s{S_OCH}, s{S_OCH}, 1")
    a(f"s_cmp_ge_u32 s{S_WAVE}, 8")
    a("s_cbranch_scc1 K2_OVG2")
    load_recs(True)
    a(f"v_lshlrev_b32 v120, 2, v{V_TID}")
    a(f"v_add_u32 v120, {L_CNT}, v120")
    a("v_mov_b32 v121, 0")
    a(f"v_cmp_gt_u32 vcc, 40, v{V_TID}")
    a("s_and_saveexec_b64 s[70:71], vcc")
    a("ds_write_b32 v120, v121")
    a("s_mov_b64 exec, s[70:71]")
    a("s_waitcnt vmcnt(0) lgkmcnt(0)")
    for k,(rec,val) in enumerate(((100,S_V0),(104,S_V1),(108,S_V2),(112,S_V3))):
        a(f"v_add_u32 v120, s69, v{V_TID}")
        if k: a(f"v_add_u32 v120, {512*k}, v120")
        a(f"v_cmp_gt_u32 s[{val}:{val+1}], s{S_OCN}, v120")
        a(f"v_and_b32 v121, 0xff, v{rec}")
        a("v_cmp_eq_u32 vcc, s2, v121")
        a(f"s_and_b64 s[{val}:{val+1}], s[{val}:{val+1}], vcc")
    a.label("K2_OVG2")
    a("s_barrier")
    a("s_branch K2_BATCH")
    a.label("K2_EPI")
    lane_tid()
    a(f"v_lshlrev_b32 v123, 4, v{V_LANE}")
    a("s_cmp_lg_u32 s15, 0")
    a("s_cbranch_scc1 K2_F1OK")
    load_f(F1, IMG_WH1, 123)
    a.label("K2_F1OK")
    a("s_cmp_eq_u32 s14, 2")
    a("s_cbranch_scc1 K2_F2OK")
    load_f(F2, IMG_WH2, 123)
    a.label("K2_F2OK")
    a(f"v_and_b32 v116, 15, v{V_LANE}")
    a(f"v_lshrrev_b32 v117, 4, v{V_LANE}")
    a("v_xor_b32 v118, v116, v117")
    a("v_lshlrev_b32 v118, 4, v118")
    a("v_lshl_add_u32 v118, v116, 9, v118")
    a(f"v_add_u32 v118, {L_HT}, v118")
    a(f"v_mul_u32_u24 v119, {MI_STR}, v116")
    a("v_lshl_add_u32 v119, v117, 4, v119")
    a(f"v_add_u32 v119, {L_MI}, v119")
    UC=104
    XB=[[92,96,100],[24,28,32],[36,40,0]]
    def rdx(step):
        ks=step%8; b=XB[step%3]
        if step<8:
            a(f"v_xor_b32 v120, {ks<<6}, v118")
            for ct in range(3): a(f"ds_read_b128 {vr(b[ct])}, v120 offset:{ct*8192}")
        else:
            for ct in range(3): a(f"ds_read_b128 {vr(b[ct])}, v119 offset:{ct*16*MI_STR+ks*64}")
    def gemm(s0):
        rdx(s0); rdx(s0+1)
        for step in range(s0,s0+8):
            rem=s0+7-step
            if rem>=2:
                rdx(step+2); a("s_waitcnt lgkmcnt(6)")
            elif rem==1: a("s_waitcnt lgkmcnt(3)")
            else: a("s_waitcnt lgkmcnt(0)")
            if step==0: a("s_waitcnt vmcnt(8)")
            if step==8: a("s_waitcnt vmcnt(0)")
            wf=F1[step] if step<8 else F2[step-8]
            b=XB[step%3]
            for ct in range(3):
                c='0' if step==0 else vr(UC+4*ct)
                a(f"v_mfma_f32_16x16x32_bf16 {vr(UC+4*ct)}, {vr(wf)}, {vr(b[ct])}, {c}")
    gemm(0)
    a("s_barrier")
    stamp(8)
    a(f"v_lshrrev_b32 v120, 7, v{V_TID}")
    a(f"v_mul_u32_u24 v120, {MI_STR}, v120")
    a(f"v_and_b32 v121, 127, v{V_TID}")
    a("v_lshl_add_u32 v120, v121, 2, v120")
    a(f"v_add_u32 v120, {L_MI}, v120")
    a("s_mov_b32 s58, 0xffff0000")
    for s in range(1,4):
        a(f"s_mul_i32 s55, s12, {32*s}")
        a("s_mov_b32 s56, 0")
        for g in range(4):
            a(f"s_cmp_ge_u32 s55, s{8+g}")
            a("s_addc_u32 s56, s56, 0")
        a(f"s_mov_b32 s{59+s}, s56")
        a(f"s_mul_i32 s57, s56, {8*MI_STR}")
        a(f"v_add_u32 v{24+s}, s57, v120")
        a(f"ds_read_b32 v{28+s}, v{24+s}")
        a(f"ds_read_b32 v{32+s}, v120 offset:{(32+8*s)*MI_STR}")
    a("s_waitcnt lgkmcnt(0)")
    for s in range(1,4):
        if s==1:
            a(f"v_lshlrev_b32 v36, 16, v{28+s}")
            a(f"v_and_b32 v37, s58, v{28+s}")
        else:
            a(f"s_cmp_eq_u32 s{59+s}, s{58+s}")
            a(f"s_cbranch_scc1 K2_FX{s}")
            a(f"v_lshlrev_b32 v36, 16, v{28+s}")
            a(f"v_and_b32 v37, s58, v{28+s}")
            a.label(f"K2_FX{s}")
        a(f"v_lshlrev_b32 v38, 16, v{32+s}")
        a(f"v_and_b32 v39, s58, v{32+s}")
        a("v_add_f32 v36, v36, v38")
        a("v_add_f32 v37, v37, v39")
        a(f"v_cvt_pk_bf16_f32 v40, v36, v37")
        a(f"ds_write_b32 v{24+s}, v40")
    a("s_waitcnt lgkmcnt(0)")
    a("s_barrier")
    stamp(12)
    gemm(8)
    stamp(13)
    a(f"s_lshl_b32 s55, s{S_WAVE}, 1")
    a("v_lshrrev_b32 v120, 1, v117")
    a("v_add_u32 v120, s55, v120")
    a("v_xor_b32 v120, v120, v116")
    a("v_lshlrev_b32 v120, 4, v120")
    a("v_lshl_add_u32 v120, v116, 9, v120")
    a("v_and_b32 v121, 1, v117")
    a("v_lshl_add_u32 v120, v121, 3, v120")
    a(f"v_add_u32 v120, {L_HT}, v120")
    for ct in range(3): a(f"ds_read_b64 v[{36+2*ct}:{37+2*ct}], v120 offset:{ct*8192}")
    a("s_mul_i32 s55, s2, 40")
    a("s_lshl_b32 s55, s55, 9")
    a(f"s_lshl_b32 s56, s{S_WAVE}, 5")
    a("s_add_u32 s55, s55, s56")
    a("v_lshlrev_b32 v121, 9, v116")
    a("v_lshl_add_u32 v121, v117, 3, v121")
    a(f"s_mov_b32 s56, {f2u(-LOG2E)}")
    a("s_mov_b32 s57, 0xffff0000")
    a("s_waitcnt lgkmcnt(0)")
    a("s_mov_b32 s58, s56") if False else None
    a(f"s_mov_b32 s66, {f2u(-LOG2E)}")
    a(f"s_mov_b32 s67, {f2u(-LOG2E)}")
    for ct in range(3):
        u=UC+4*ct
        for r in (0,2): a(f"v_pk_mul_f32 v[{8+r}:{9+r}], v[{u+r}:{u+r+1}], s[66:67]")
        for r in range(4): a(f"v_exp_f32 v{8+r}, v{8+r}")
        h0,h1=36+2*ct,37+2*ct
        a(f"v_lshlrev_b32 v12, 16, v{h0}")
        a(f"v_and_b32 v13, s57, v{h0}")
        for r in (0,2): a(f"v_pk_add_f32 v[{8+r}:{9+r}], v[{8+r}:{9+r}], 1.0")
        for r in range(4): a(f"v_rcp_f32 v{8+r}, v{8+r}")
        a(f"v_lshlrev_b32 v14, 16, v{h1}")
        a(f"v_and_b32 v15, s57, v{h1}")
        for r in (0,2): a(f"v_pk_fma_f32 v[{8+r}:{9+r}], v[{8+r}:{9+r}], v[{u+r}:{u+r+1}], v[{12+r}:{13+r}]")
        a(f"v_cvt_pk_bf16_f32 v{16+2*ct}, v8, v9")
        a(f"v_cvt_pk_bf16_f32 v{17+2*ct}, v10, v11")
        if ct==2:
            a("v_cmp_gt_u32 vcc, 8, v116")
            a("s_and_saveexec_b64 s[70:71], vcc")
        a(f"s_add_u32 s58, s55, {ct*8192}")
        a(f"buffer_store_dwordx2 v[{16+2*ct}:{17+2*ct}], v121, s[44:47], s58 offen")
        if ct==2: a("s_mov_b64 exec, s[70:71]")
    stamp(9)
    rstamp(15)
    stamp_out()
    a(f"s_cmp_ge_u32 s{S_WAVE}, 2")
    a("s_cbranch_scc1 K2_END")
    a(f"v_mbcnt_lo_u32_b32 v{V_LANE}, -1, 0")
    a(f"v_mbcnt_hi_u32_b32 v{V_LANE}, -1, v{V_LANE}")
    a(f"s_lshl_b32 s55, s{S_WAVE}, 6")
    a(f"v_add_u32 v8, s55, v{V_LANE}")
    a("v_mul_u32_u24 v9, 0x5556, v8")
    a("v_lshrrev_b32 v9, 16, v9")
    a("v_mul_u32_u24 v10, 3, v9")
    a("v_sub_u32 v10, v8, v10")
    a("v_lshrrev_b32 v15, 3, v9")
    a("v_and_b32 v16, 7, v9")
    a("v_lshl_add_u32 v16, v16, 2, v10")
    a("v_lshlrev_b32 v16, 2, v16")
    a(f"v_add_u32 v16, {L_POS+4}, v16")
    a("v_lshl_add_u32 v11, v15, 7, v16")
    for w in range(4): a(f"ds_read_b32 v{20+w}, v11 offset:{w*1024}")
    for s in range(1,4):
        for w in range(4): a(f"ds_read_b32 v{20+4*s+w}, v16 offset:{w*1024+(4+s)*128}")
    srd(a,72,6,N*6)
    a("s_mul_i32 s55, s2, 240")
    a("v_lshlrev_b32 v13, 1, v8")
    a("v_cmp_gt_u32 vcc, 120, v8")
    a("s_and_saveexec_b64 s[70:71], vcc")
    a("s_cbranch_execz K2_END")
    a("buffer_load_ushort v14, v13, s[72:75], s55 offen")
    a("s_waitcnt lgkmcnt(0)")
    a("v_add_f32 v20, v20, v21")
    a("v_add_f32 v22, v22, v23")
    a("v_add_f32 v12, v20, v22")
    for s in range(1,4):
        b=20+4*s
        a(f"v_add_f32 v{b}, v{b}, v{b+1}")
        a(f"v_add_f32 v{b+2}, v{b+2}, v{b+3}")
        a(f"v_add_f32 v{b}, v{b}, v{b+2}")
        a(f"v_cmp_eq_u32 vcc, s{59+s}, v15")
        a(f"v_cndmask_b32 v{b}, 0, v{b}, vcc")
        a(f"v_add_f32 v12, v12, v{b}")
    a(f"s_mov_b32 s56, {f2u(-LN2)}")
    a("s_waitcnt vmcnt(0)")
    a("v_lshlrev_b32 v14, 16, v14")
    a("v_fma_f32 v14, v12, s56, v14")
    a("v_cvt_pk_bf16_f32 v14, v14, v14")
    a(f"s_add_u32 s55, s55, {N*512}")
    a("buffer_store_short v14, v13, s[44:47], s55 offen")
    a.label("K2_END")
    a("s_endpgm")
    return a
```

```python
from asmgen import Asm
from k1 import *
TCAP=24
MI_STR=544
L_LUT=0
L_SEL=512
L_W3=512
L_S2=8704
L_MI=L_S2+(TCAP+4)*2048
L_POS=L_MI+64*MI_STR
L_CNT=L_POS+4096
L_OVM=L_CNT+248
ZERO_BEG=L_S2; ZERO_END=L_CNT+256
L_AT=(ZERO_END+511)//512*512
L_HT=L_AT+20480
L_OFF=L_HT+20480
L_EI=L_OFF+TCAP*128
L_WXF=L_EI+TCAP*256
L_SB=L_WXF+512
K2_LDS=L_SB+64
NZ=(ZERO_END-ZERO_BEG+16383)//16384
assert ZERO_BEG+NZ*16384 <= L_HT
assert L_HT+48*512 <= K2_LDS and K2_LDS<=163840 and L_HT%512==0
PADOFF=0x500000
V_S2A=0; V_HH16=1; V_LOFF=2; V_WD=3; V_EIA=4; V_INF=5; V_TA=6; V_TB=7
W3L=8; W3H=12; ATL=16; ATH=20; X1=24; X2=28; S2A=32; T=36; G=44; L=60; H=76; D2L=92; D2H=108
V_PP=124; V_PP2=125; V_LANE=126; V_TMP=127; V_TMP2=123; V_TID=122
def vr(b,n=4): return f"v[{b}:{b+n-1}]"
S_WAVE=52; S_W=53; S_SUB=54; S_G1=56; S_N=60; S_T=61; S_TL=62; S_TE=63; S_CUR=64; S_ATG=65; S_RB=66
S_V0=76; S_V1=78; S_V2=16; S_V3=18; S_FIRST=80; S_PRE=81; S_OVM=82; S_OCH=84; S_OCN=85; S_OP=86; S_RB0=87; S_RB1=88; S_CONT=89
S_GB=92; S_STR=93; S_NXT=94; S_PER=95; S_PG=96

def gen_k2(dbg=False, abl=()):
    a=Asm()
    def stamp(i):
        if not dbg: return
        a(f"s_memtime s[90:91]")
        a("s_waitcnt lgkmcnt(0)")
        a(f"v_writelane_b32 v{V_TMP}, s90, {i}")
    def rstamp(i):
        if not dbg: return
        a(f"s_memrealtime s[90:91]")
        a("s_waitcnt lgkmcnt(0)")
        a(f"v_writelane_b32 v{V_TMP}, s90, {i}")
    def stamp_out():
        if not dbg: return
        a(f"s_cmp_eq_u32 s2, {dbg-1}")
        a(f"s_cbranch_scc0 K2_STX")
        a(f"v_mbcnt_lo_u32_b32 v{V_LANE}, -1, 0")
        a(f"v_mbcnt_hi_u32_b32 v{V_LANE}, -1, v{V_LANE}")
        a(f"s_lshl_b32 s90, s{S_WAVE}, 6")
        a(f"v_lshl_add_u32 v{V_LANE}, v{V_LANE}, 2, s90")
        a(f"s_mov_b64 exec, 0xffff")
        a(f"global_store_dword v{V_LANE}, v{V_TMP}, s[22:23]")
        a(f"s_mov_b64 exec, -1")
        a.label("K2_STX")
        a(f"s_cmp_eq_u32 s{S_WAVE}, 15")
        a("s_cbranch_scc0 K2_RT")
        a("s_memrealtime s[90:91]")
        a("s_waitcnt lgkmcnt(0)")
        a("v_mov_b32 v8, s26")
        a("v_mov_b32 v9, s90")
        a("s_lshl_b32 s90, s2, 3")
        a("s_add_u32 s90, s90, 0x2000000")
        a("v_mov_b32 v10, s90")
        a("global_store_dwordx2 v10, v[8:9], s[24:25]")
        a.label("K2_RT")
    def lane_tid():
        a(f"v_mbcnt_lo_u32_b32 v{V_LANE}, -1, 0")
        a(f"v_mbcnt_hi_u32_b32 v{V_LANE}, -1, v{V_LANE}")
        a(f"s_lshl_b32 s55, s{S_WAVE}, 6")
        a(f"v_add_u32 v{V_TID}, s55, v{V_LANE}")
    def pad_tables(tid16, t0):
        a(f"v_mov_b32 v{t0}, {PADOFF}")
        a(f"v_mov_b32 v{t0+1}, {15<<5}")
        a(f"v_mov_b32 v{t0+2}, {PADOFF}")
        a(f"v_mov_b32 v{t0+3}, {15<<5}")
        a(f"v_add_u32 v{t0+4}, {L_EI}, v{tid16}")
        a(f"v_cmp_gt_u32 vcc, {TCAP*16}, v{V_TID}")
        a("s_and_saveexec_b64 s[70:71], vcc")
        a(f"ds_write_b128 v{t0+4}, {vr(t0)}")
        a("s_mov_b64 exec, s[70:71]")
        a(f"v_mov_b32 v{t0+1}, {PADOFF}")
        a(f"v_mov_b32 v{t0+3}, {PADOFF}")
        a(f"v_add_u32 v{t0+4}, {L_OFF}, v{tid16}")
        a(f"v_cmp_gt_u32 vcc, {TCAP*8}, v{V_TID}")
        a("s_and_saveexec_b64 s[70:71], vcc")
        a(f"ds_write_b128 v{t0+4}, {vr(t0)}")
        a("s_mov_b64 exec, s[70:71]")
    def zero_region(tid16, t0, beg, n16k, end=None):
        for i in range(4): a(f"v_mov_b32 v{t0+i}, 0")
        a(f"v_add_u32 v{t0+4}, {beg}, v{tid16}")
        for k in range(n16k):
            if k==3: a(f"v_add_u32 v{t0+4}, {3*16384}, v{t0+4}")
            lim = end is not None and k==n16k-1 and beg+n16k*16384>end
            if lim:
                a(f"v_cmp_gt_u32 vcc, {(end-beg-(n16k-1)*16384)//16}, v{V_TID}")
                a("s_and_saveexec_b64 s[70:71], vcc")
            a(f"ds_write_b128 v{t0+4}, {vr(t0)} offset:{(k%3)*16384}")
            if lim: a("s_mov_b64 exec, s[70:71]")

    sbn=[0]
    def sb_arrive(idx, tmp):
        a(f"v_mov_b32 v{tmp}, {L_SB+4*idx}")
        a(f"v_mov_b32 v{tmp+1}, 1")
        a("s_mov_b64 exec, 1")
        a(f"ds_add_u32 v{tmp}, v{tmp+1}")
        a("s_mov_b64 exec, -1")
    def sb_wait(idx, tmp, target=8):
        sbn[0]+=1; l=f"K2_SBW{sbn[0]}"
        a(f"v_mov_b32 v{tmp}, {L_SB+4*idx}")
        a.label(l)
        a(f"ds_read_b32 v{tmp+1}, v{tmp}")
        a("s_waitcnt lgkmcnt(0)")
        a(f"v_readfirstlane_b32 s69, v{tmp+1}")
        a(f"s_cmp_ge_u32 s69, {target}")
        a(f"s_cbranch_scc1 {l}X")
        a("s_sleep 1")
        a(f"s_branch {l}")
        a.label(l+"X")
    RECS=((100,S_V0),(104,S_V1),(108,S_V2),(112,S_V3))
    DL=lambda k: 60+k; CA=lambda k: 64+k; RK=lambda k: 68+k; RL=lambda k: 72+k
    def load_recs(all4):
        a(f"v_lshlrev_b32 v121, 4, v{V_TID}")
        a(f"v_add_u32 v120, 8192, v121")
        a(f"buffer_load_dwordx4 v[100:103], v121, s[40:43], s{S_RB0} offen")
        a(f"buffer_load_dwordx4 v[104:107], v120, s[40:43], s{S_RB0} offen")
        if all4:
            a(f"buffer_load_dwordx4 v[108:111], v121, s[40:43], s{S_RB1} offen")
            a(f"buffer_load_dwordx4 v[112:115], v120, s[40:43], s{S_RB1} offen")
    def zero512(beg, end, t0):
        n=(end-beg+8191)//8192
        for i in range(4): a(f"v_mov_b32 v{t0+i}, 0")
        a(f"v_add_u32 v{t0+4}, {beg}, v121")
        for k in range(n):
            if k and k%7==0: a(f"v_add_u32 v{t0+4}, {7*8192}, v{t0+4}")
            lim = (k==n-1 and beg+n*8192>end)
            if lim:
                a(f"v_cmp_gt_u32 vcc, {(end-beg-(n-1)*8192)//16}, v{V_TID}")
                a("s_and_saveexec_b64 s[70:71], vcc")
            a(f"ds_write_b128 v{t0+4}, {vr(t0)} offset:{(k%7)*8192}")
            if lim: a("s_mov_b64 exec, s[70:71]")
    def pad512(t0):
        a(f"v_mov_b32 v{t0}, {PADOFF}")
        a(f"v_mov_b32 v{t0+1}, {15<<5}")
        a(f"v_mov_b32 v{t0+2}, {PADOFF}")
        a(f"v_mov_b32 v{t0+3}, {15<<5}")
        a(f"v_add_u32 v{t0+4}, {L_EI}, v121")
        a(f"v_cmp_gt_u32 vcc, {TCAP*16}, v{V_TID}")
        a("s_and_saveexec_b64 s[70:71], vcc")
        a(f"ds_write_b128 v{t0+4}, {vr(t0)}")
        a("s_mov_b64 exec, s[70:71]")
        a(f"v_mov_b32 v{t0+1}, {PADOFF}")
        a(f"v_mov_b32 v{t0+3}, {PADOFF}")
        a(f"v_add_u32 v{t0+4}, {L_OFF}, v121")
        a(f"v_cmp_gt_u32 vcc, {TCAP*8}, v{V_TID}")
        a("s_and_saveexec_b64 s[70:71], vcc")
        a(f"ds_write_b128 v{t0+4}, {vr(t0)}")
        a("s_mov_b64 exec, s[70:71]")
    assert TCAP*16<=512
    def small_loads():
        a(f"s_mov_b32 s13, {512*512}")
        a(f"buffer_load_dword v{V_WD}, v{V_LOFF}, s[48:51], s13 offen")
    a(f"s_cmp_ge_u32 s2, {NB}")
    a("s_cbranch_scc1 K2_END")
    if dbg: a("s_memrealtime s[26:27]")
    a("s_load_dwordx2 s[24:25], s[0:1], 80")
    a("s_load_dwordx16 s[4:19], s[0:1], 0")
    a("s_load_dwordx4 s[20:23], s[0:1], 64")
    a(f"v_mov_b32 v{V_TID}, v0")
    a(f"v_and_b32 v{V_LANE}, 63, v0")
    a("v_lshrrev_b32 v120, 6, v0")
    a(f"v_readfirstlane_b32 s{S_WAVE}, v120")
    a(f"s_lshl_b32 s{S_RB0}, s2, 15")
    a(f"s_add_u32 s{S_RB0}, s{S_RB0}, {WS_CELL}")
    a(f"s_add_u32 s{S_RB1}, s{S_RB0}, 16384")
    a(f"s_and_b32 s{S_W}, s{S_WAVE}, 3")
    a(f"s_lshr_b32 s{S_SUB}, s{S_WAVE}, 2")
    a(f"v_and_b32 v{V_TA}, 31, v{V_LANE}")
    a(f"v_lshrrev_b32 v{V_TB}, 5, v{V_LANE}")
    a(f"v_lshlrev_b32 v{V_TMP2}, 4, v{V_LANE}")
    a(f"v_lshlrev_b32 v{V_HH16}, 4, v{V_TB}")
    a(f"s_lshl_b32 s55, s{S_W}, 7")
    a(f"v_lshl_add_u32 v{V_LOFF}, v{V_TA}, 2, s55")
    a(f"v_lshlrev_b32 v{V_S2A}, 10, v{V_TB}")
    a(f"v_lshl_add_u32 v{V_S2A}, v{V_TA}, 4, v{V_S2A}")
    a(f"v_add_u32 v{V_S2A}, {L_S2}, v{V_S2A}")
    a(f"v_bfe_u32 v121, v{V_TA}, 2, 1")
    a(f"v_lshlrev_b32 v{V_EIA}, 4, v121")
    a(f"v_and_b32 v121, 3, v{V_TA}")
    a(f"v_add_u32 v{V_EIA}, v{V_EIA}, v121")
    a(f"v_lshrrev_b32 v121, 3, v{V_TA}")
    a(f"v_lshl_add_u32 v{V_EIA}, v121, 2, v{V_EIA}")
    a(f"v_lshlrev_b32 v{V_EIA}, 3, v{V_EIA}")
    a(f"v_add_u32 v{V_EIA}, {L_EI}, v{V_EIA}")
    a("s_lshl_b32 s55, s2, 8")
    a(f"s_add_u32 s55, s55, {WS_HDR}")
    a(f"v_lshrrev_b32 v120, 4, v{V_TID}")
    a("v_lshlrev_b32 v120, 2, v120")
    a(f"v_lshlrev_b32 v8, 2, v{V_LANE}")
    a(f"v_add_u32 v8, {L_SB}, v8")
    a("v_mov_b32 v9, 0")
    a("s_mov_b64 exec, 0xffff")
    a("ds_write_b32 v8, v9")
    a("s_mov_b64 exec, -1")
    a("s_waitcnt lgkmcnt(0)")
    a("s_barrier")
    stamp(0)
    rstamp(14)
    srd(a,40,24,WS_END)
    srd(a,32,8,E*32)
    srd(a,36,24,WS_B_SIZE)
    srd(a,44,20,2590000*2)
    a(f"s_mov_b32 s{S_FIRST}, 1")
    a(f"s_mov_b64 s[{S_OVM}:{S_OVM+1}], 0")
    a(f"s_mov_b32 s{S_OCH}, 0")
    a(f"s_mov_b32 s{S_OCN}, 0")
    a(f"s_mov_b32 s{S_OP}, 0")
    a(f"s_mov_b32 s{S_PRE}, 0")
    a(f"s_cmp_ge_u32 s{S_WAVE}, 8")
    a("s_cbranch_scc1 K2_GW")
    a("buffer_load_dword v116, v120, s[40:43], s55 offen")
    a("buffer_load_dword v117, v120, s[40:43], s55 offen offset:128")
    load_recs(False)
    srd(a,48,14,529*512)
    a("s_mov_b32 s14, 0")
    zero512(ZERO_BEG, ZERO_END, 24)
    a("s_waitcnt vmcnt(2)")
    a(f"v_and_b32 v119, 15, v{V_TID}")
    a(f"v_cmp_lt_u32 s[{S_V0}:{S_V0+1}], v119, v116")
    a(f"v_cmp_lt_u32 s[{S_V1}:{S_V1+1}], v119, v117")
    a("v_add_u32 v119, 16, v119")
    a(f"v_cmp_lt_u32 s[{S_V2}:{S_V2+1}], v119, v116")
    a(f"v_cmp_lt_u32 s[{S_V3}:{S_V3+1}], v119, v117")
    a(f"s_mov_b64 exec, s[{S_V2}:{S_V2+1}]")
    a("s_cbranch_execz K2_NOA1")
    a(f"buffer_load_dwordx4 v[108:111], v121, s[40:43], s{S_RB1} offen")
    a.label("K2_NOA1")
    a(f"s_mov_b64 exec, s[{S_V3}:{S_V3+1}]")
    a("s_cbranch_execz K2_NOB1")
    a(f"buffer_load_dwordx4 v[112:115], v120, s[40:43], s{S_RB1} offen")
    a.label("K2_NOB1")
    a("s_mov_b64 exec, -1")
    pad512(24)
    a(f"v_lshrrev_b32 v92, 1, v{V_TID}")
    a(f"v_and_b32 v93, 1, v{V_TID}")
    a("v_lshlrev_b32 v93, 3, v93")
    a("v_sub_u32 v92, v92, v93")
    a("v_lshrrev_b32 v93, 1, v92")
    a("v_and_b32 v94, 1, v92")
    a("v_lshlrev_b32 v94, 4, v94")
    a("v_mov_b32 v95, 0x3f80")
    a("v_lshlrev_b32 v95, v94, v95")
    for q in range(4):
        a(f"v_cmp_eq_u32 vcc, {q}, v93")
        a(f"v_cndmask_b32 v{24+q}, 0, v95, vcc")
    a(f"v_cmp_eq_u32 vcc, 31, v{V_TID}")
    a("v_cndmask_b32 v27, v27, 0, vcc")
    a(f"v_cmp_gt_u32 vcc, 32, v{V_TID}")
    a("s_and_saveexec_b64 s[70:71], vcc")
    a("ds_write_b128 v121, v[24:27]")
    a("s_mov_b64 exec, s[70:71]")
    if 'sel' in abl:
        a(f"v_lshrrev_b32 v92, 6, v{V_TID}")
        a(f"v_and_b32 v93, 31, v{V_TID}")
        a(f"v_bfe_u32 v94, v{V_TID}, 5, 1")
        a("v_lshlrev_b32 v92, 3, v92")
        a("v_lshl_add_u32 v92, v94, 2, v92")
        a("v_sub_u32 v93, v93, v92")
        a("v_mov_b32 v95, 0x3f80")
        for q in range(4):
            a(f"v_cmp_eq_u32 vcc, {q}, v93")
            a(f"v_cndmask_b32 v{24+q}, 0, v95, vcc")
        a(f"v_add_u32 v92, {L_SEL}, v121")
        a(f"v_cmp_gt_u32 vcc, 256, v{V_TID}")
        a("s_and_saveexec_b64 s[70:71], vcc")
        a("ds_write_b128 v92, v[24:27]")
        a("s_mov_b64 exec, s[70:71]")
    stamp(11)
    a("s_waitcnt lgkmcnt(0)")
    sb_arrive(0, 36)
    sb_wait(0, 36)
    a("s_waitcnt vmcnt(0)")
    a("s_branch K2_B1")
    a.label("K2_GW")
    srd(a,28,4,N*512)
    srd(a,48,14,529*512)
    a(f"s_sub_u32 s67, s{S_WAVE}, 8")
    a("s_mul_i32 s55, s67, 5")
    a("s_mul_i32 s14, s2, 40")
    for j in range(3):
        a(f"s_add_u32 s68, s55, {2*j}")
        a(f"v_add_u32 v8, s68, v{V_TB}")
        a("v_and_b32 v9, 15, v8")
        a(f"v_xor_b32 v9, v9, v{V_TA}")
        a("v_lshlrev_b32 v9, 4, v9")
        a(f"v_lshl_or_b32 v9, v{V_TB}, 9, v9")
        a("s_add_u32 s56, s14, s68")
        a("s_lshl_b32 s56, s56, 9")
        a("s_lshl_b32 s57, s68, 9")
        a(f"s_add_u32 m0, s57, {L_HT}")
        if j==2: a("s_mov_b64 exec, 0xffffffff")
        a("buffer_load_dwordx4 v9, s[28:31], s56 offen lds")
        if j==2: a("s_mov_b64 exec, -1")
    a("s_lshl_b32 s56, s67, 10")
    a(f"s_add_u32 m0, s56, {L_W3}")
    a(f"s_add_u32 s56, s56, {IMG_W3}")
    a(f"buffer_load_dwordx4 v{V_TMP2}, s[40:43], s56 offen lds")
    srd(a,72,16,512)
    a(f"v_subrev_u32 v120, 512, v{V_TID}")
    a("v_and_b32 v16, 0xc0, v120")
    a(f"v_lshl_add_u32 v16, v{V_TA}, 1, v16")
    a("v_bfe_u32 v17, v120, 5, 1")
    a("v_add_u32 v16, v16, v17")
    a("v_lshlrev_b32 v16, 1, v16")
    a("v_mov_b32 v18, 0x7ffffff0")
    a("v_cmp_gt_u32 vcc, 256, v120")
    a("v_cndmask_b32 v16, v18, v16, vcc")
    a(f"buffer_load_ushort v{V_PP}, v16, s[72:75], 0 offen")
    a("v_lshrrev_b32 v19, 6, v120")
    a("v_lshlrev_b32 v19, 7, v19")
    a("v_lshl_add_u32 v19, v17, 6, v19")
    a(f"v_lshrrev_b32 v18, 4, v{V_TA}")
    a("v_lshl_add_u32 v19, v18, 5, v19")
    a(f"v_bfe_u32 v18, v{V_TA}, 2, 1")
    a("v_lshl_add_u32 v19, v18, 4, v19")
    a(f"v_and_b32 v18, 3, v{V_TA}")
    a("v_lshl_add_u32 v19, v18, 1, v19")
    a(f"v_bfe_u32 v18, v{V_TA}, 3, 1")
    a("v_lshl_add_u32 v19, v18, 3, v19")
    a(f"v_add_u32 v{V_PP2}, {L_WXF}, v19")
    small_loads()
    a("s_mov_b32 s14, 0")
    WF=56
    a(f"s_lshl_b32 s13, s67, 14")
    a(f"s_add_u32 s13, s13, {IMG_W1}")
    a("s_add_u32 s12, s13, 8192")
    for ks in range(8):
        if ks==4:
            a("s_add_u32 s13, s13, 4096")
            a("s_add_u32 s12, s12, 4096")
        if 'now1' not in abl:
            a(f"buffer_load_dwordx4 {vr(WF+4*ks)}, v{V_TMP2}, s[40:43], s13 offen offset:{(ks%4)*1024}")
            a(f"buffer_load_dwordx4 {vr(WF+32+4*ks)}, v{V_TMP2}, s[40:43], s12 offen offset:{(ks%4)*1024}")
    stamp(11)
    a("s_waitcnt vmcnt(%d)"%(2 if "now1" in abl else 18))
    sb_arrive(1, 8)
    sb_wait(1, 8)
    stamp(1)
    a(f"v_and_b32 v{V_TA}, 15, v{V_LANE}")
    a(f"v_lshrrev_b32 v{V_TB}, 4, v{V_LANE}")
    a(f"v_xor_b32 v120, v{V_TA}, v{V_TB}")
    a("v_lshlrev_b32 v120, 4, v120")
    a(f"v_lshl_add_u32 v120, v{V_TA}, 9, v120")
    a(f"v_add_u32 v120, {L_HT}, v120")
    AC=8; AF=32
    def rdh(ks):
        a(f"v_xor_b32 v121, {ks<<6}, v120")
        for rt in range(3): a(f"ds_read_b128 {vr(AF+12*(ks%2)+4*rt)}, v121 offset:{rt*8192}")
    rdh(0)
    for ks in range(8):
        if ks<7:
            rdh(ks+1); a(f"s_waitcnt vmcnt({14-2*ks}) lgkmcnt(3)")
        else: a("s_waitcnt vmcnt(0) lgkmcnt(0)")
        for c in range(2):
            for rt in range(3):
                acc=AC+12*c+4*rt
                cc='0' if ks==0 else vr(acc)
                a(f"v_mfma_f32_16x16x32_bf16 {vr(acc)}, {vr(AF+12*(ks%2)+4*rt)}, {vr(WF+32*c+4*ks)}, {cc}")
    a(f"s_sub_u32 s67, s{S_WAVE}, 8")
    a("s_lshl_b32 s55, s67, 5")
    a(f"v_add_u32 v121, s55, v{V_TA}")
    a("v_mul_u32_u24 v121, 80, v121")
    a(f"v_lshl_add_u32 v121, v{V_TB}, 3, v121")
    a(f"v_add_u32 v121, {L_AT}, v121")
    a(f"s_mov_b32 s55, {f2u(-LOG2E)}")
    for c in range(2):
        for rt in range(3):
            acc=AC+12*c+4*rt
            for r in range(4): a(f"v_mul_f32 v{acc+r}, s55, v{acc+r}")
            o=32+2*(3*c+rt)
            a(f"v_cvt_pk_bf16_f32 v{o}, v{acc}, v{acc+1}")
            a(f"v_cvt_pk_bf16_f32 v{o+1}, v{acc+2}, v{acc+3}")
            if rt==2: a("s_mov_b64 exec, 0xffffffff")
            a(f"ds_write_b64 v121, v[{o}:{o+1}] offset:{rt*32+c*16*80}")
            if rt==2: a("s_mov_b64 exec, -1")
    a("s_waitcnt vmcnt(0)")
    a(f"v_subrev_u32 v120, 512, v{V_TID}")
    a("v_cmp_gt_u32 vcc, 256, v120")
    a("s_and_saveexec_b64 s[70:71], vcc")
    a(f"ds_write_b16 v{V_PP2}, v{V_PP}")
    a("s_mov_b64 exec, s[70:71]")
    stamp(2)
    sb_wait(2, 36)
    stamp(3)
    a("s_branch K2_SCAN")
    a.label("K2_B1")
    stamp(1)
    a("v_max_u32 v118, v116, v117")
    a("v_cmp_lt_u32 vcc, 32, v118")
    a("s_and_saveexec_b64 s[70:71], vcc")
    a("s_cbranch_execz K2_NOOV2")
    for hv,add in ((116,0),(117,32)):
        a(f"v_lshrrev_b32 v119, 4, v{V_TID}")
        if add: a(f"v_add_u32 v119, {add}, v119")
        a(f"v_cmp_lt_u32 vcc, 32, v{hv}")
        a("v_cndmask_b32 v120, 0, 1, vcc")
        a("v_mov_b32 v121, 0")
        a("v_lshlrev_b64 v[120:121], v119, v[120:121]")
        a(f"v_mov_b32 v119, {L_OVM}")
        a("ds_or_b64 v119, v[120:121]")
    a.label("K2_NOOV2")
    a("s_mov_b64 exec, s[70:71]")
    stamp(2)
    a.label("K2_BATCH")
    a(f"s_cmp_ge_u32 s{S_WAVE}, 8")
    a("s_cbranch_scc1 K2_RANKED")
    a("v_mov_b32 v119, 1")
    for k,(rec,val) in enumerate(RECS):
        a(f"v_bfe_u32 v{DL(k)}, v{rec}, 24, 6")
        a(f"v_lshlrev_b32 v{CA(k)}, 2, v{DL(k)}")
        a(f"v_add_u32 v118, {L_CNT}, v{CA(k)}")
        a(f"s_mov_b64 exec, s[{val}:{val+1}]")
        a(f"ds_add_rtn_u32 v{RK(k)}, v118, v119")
        a("s_mov_b64 exec, -1")
    a(f"s_cmp_eq_u32 s{S_FIRST}, 0")
    a("s_cbranch_scc1 K2_RANKED")
    small_loads()
    a("s_waitcnt lgkmcnt(0)")
    sb_arrive(2, 36)
    sb_wait(2, 36)
    stamp(3)
    a("s_branch K2_SCAN")
    a.label("K2_RANKED")
    a("s_waitcnt lgkmcnt(0)")
    a("s_barrier")
    a.label("K2_SCAN")
    a(f"v_lshlrev_b32 v36, 2, v{V_LANE}")
    a(f"v_add_u32 v36, {L_CNT}, v36")
    a("ds_read_b32 v37, v36")
    a(f"v_mov_b32 v38, {L_OVM}")
    a("ds_read_b64 v[38:39], v38")
    a(f"v_cmp_gt_u32 vcc, 40, v{V_LANE}")
    a("s_waitcnt lgkmcnt(0)")
    a("v_cndmask_b32 v37, 0, v37, vcc")
    a("v_mov_b32 v40, v37")
    for sh in (1,2,4,8):
        a(f"v_add_u32_dpp v40, v40, v40 row_shr:{sh} row_mask:0xf bank_mask:0xf bound_ctrl:0")
    a("v_add_u32_dpp v40, v40, v40 row_bcast:15 row_mask:0xa bank_mask:0xf")
    a("v_add_u32_dpp v40, v40, v40 row_bcast:31 row_mask:0xc bank_mask:0xf")
    a("v_sub_u32 v41, v40, v37")
    a(f"s_cmp_eq_u32 s{S_FIRST}, 0")
    a("s_cbranch_scc1 K2_NOMASK")
    a(f"v_readfirstlane_b32 s{S_OVM}, v38")
    a(f"v_readfirstlane_b32 s{S_OVM+1}, v39")
    a.label("K2_NOMASK")
    for g in range(4): a(f"v_readlane_b32 s{S_G1+g}, v41, {8*(g+1)}")
    a(f"v_readlane_b32 s{S_N}, v40, 39")
    a("v_and_b32 v42, -32, v41")
    a(f"v_cmp_le_u32 vcc, s{S_G1}, v42")
    a(f"v_cndmask_b32 v43, 0, 1, vcc")
    for g in range(1,4):
        a(f"v_cmp_le_u32 vcc, s{S_G1+g}, v42")
        a(f"v_addc_co_u32 v43, vcc, 0, v43, vcc")
    a("v_lshlrev_b32 v43, 3, v43")
    a(f"v_sub_u32 v43, v{V_LANE}, v43")
    a("v_cmp_lt_i32 vcc, 14, v43")
    a("v_cmp_lt_u32 s[70:71], 0, v37")
    a("s_and_b64 vcc, vcc, s[70:71]")
    a("s_cbranch_vccz K2_DENSE")
    AG=[None,97,98,99,100]
    a(f"s_add_u32 s97, s{S_G1}, 31")
    a("s_and_b32 s97, s97, -32")
    for g in range(2,5):
        a(f"s_sub_u32 s{AG[g]}, s{S_G1+g-1}, s{S_G1+g-2}")
        a(f"s_add_u32 s{AG[g]}, s{AG[g]}, 31")
        a(f"s_and_b32 s{AG[g]}, s{AG[g]}, -32")
        a(f"s_add_u32 s{AG[g]}, s{AG[g]}, s{AG[g-1]}")
    a(f"s_sub_u32 s{S_N}, s{S_N}, s{S_G1+3}")
    a(f"s_add_u32 s{S_N}, s{S_N}, s100")
    for g in range(1,5):
        a(f"s_sub_u32 s69, s{AG[g]}, s{S_G1+g-1}")
        a(f"v_mov_b32 v42, s69")
        a(f"v_cmp_le_u32 vcc, {8*g}, v{V_LANE}")
        if g==1: a(f"v_cndmask_b32 v43, 0, v42, vcc")
        else:    a(f"v_cndmask_b32 v43, v43, v42, vcc")
    a("v_add_u32 v41, v41, v43")
    a(f"v_and_b32 v43, 7, v{V_LANE}")
    for g in range(1,5): a(f"s_mov_b32 s{S_G1+g-1}, s{AG[g]}")
    a.label("K2_DENSE")
    a(f"s_add_u32 s{S_T}, s{S_N}, 31")
    a(f"s_lshr_b32 s{S_T}, s{S_T}, 5")
    a(f"s_mov_b32 s{S_RB}, 0")
    a(f"s_cmp_ge_u32 s{S_WAVE}, 8")
    a("s_cbranch_scc1 K2_GW2")
    a("v_and_b32 v43, 15, v43")
    a("v_lshl_or_b32 v41, v43, 16, v41")
    for k in range(4): a(f"ds_bpermute_b32 v{24+k}, v{CA(k)}, v41")
    a("s_waitcnt lgkmcnt(0)")
    for k in range(4):
        a(f"v_and_b32 v36, 0xffff, v{24+k}")
        a(f"v_add_u32 v{RK(k)}, v36, v{RK(k)}")
        a(f"v_xor_b32 v36, v36, v{RK(k)}")
        a(f"v_lshrrev_b32 v{RL(k)}, 16, v{24+k}")
        a(f"v_and_b32 v37, 7, v{DL(k)}")
        a(f"v_cmp_gt_u32 vcc, 32, v36")
        a(f"v_cndmask_b32 v{RL(k)}, v37, v{RL(k)}, vcc")
        a(f"v_and_b32 v{RK(k)}, 0xfff, v{RK(k)}")
    for pp,(k0,k1_) in ((V_PP,(0,1)),(V_PP2,(2,3))):
        a(f"v_lshl_or_b32 v{pp}, v{RL(k0)}, 12, v{RK(k0)}")
        a(f"v_lshl_or_b32 v36, v{RL(k1_)}, 12, v{RK(k1_)}")
        a(f"v_lshl_or_b32 v{pp}, v36, 16, v{pp}")
    stamp(4)
    a(f"s_cmp_lg_u32 s{S_FIRST}, 0")
    a("s_cbranch_scc1 K2_CLEAN")
    a("s_branch K2_ROUND")
    a.label("K2_GW2")
    a(f"s_cmp_eq_u32 s{S_FIRST}, 0")
    a("s_cbranch_scc1 K2_ROUND")
    a("s_branch K2_WDONE")
    a.label("K2_ROUND")
    lane_tid()
    a(f"s_cmp_ge_u32 s{S_WAVE}, 8")
    a("s_cbranch_scc1 K2_RND2")
    load_recs(True)
    zero512(L_S2, L_S2+(TCAP+4)*2048, 24)
    pad512(24)
    a("s_waitcnt vmcnt(0) lgkmcnt(0)")
    for k,(rec,val) in enumerate(RECS):
        pp=V_PP if k<2 else V_PP2
        sh=16*(k%2)
        a(f"v_bfe_u32 v{DL(k)}, v{rec}, 24, 6")
        a(f"v_bfe_u32 v{RK(k)}, v{pp}, {sh}, 12")
        a(f"v_bfe_u32 v{RL(k)}, v{pp}, {sh+12}, 4")
    a.label("K2_RND2")
    a("s_barrier")
    a(f"s_cmp_ge_u32 s{S_WAVE}, 8")
    a("s_cbranch_scc1 K2_WDONE")
    tr=[0]
    def tile_range():
        a(f"s_sub_u32 s55, s{S_T}, s{S_RB}")
        a(f"s_min_u32 s55, s55, {TCAP}")
        a(f"s_add_u32 s{S_PER}, s55, 3")
        a(f"s_lshr_b32 s{S_PER}, s{S_PER}, 2")
        if 'even' in abl:
            a(f"s_mul_i32 s{S_TL}, s{S_PER}, s{S_SUB}")
            a(f"s_add_u32 s{S_TE}, s{S_TL}, s{S_PER}")
            a(f"s_mov_b32 s4, s{S_PER}")
        else:
            a(f"s_lshl_b32 s67, s{S_PER}, 1")
            a("s_min_u32 s67, s67, s55")
            a("s_sub_u32 s68, s55, s67")
            a("s_add_u32 s68, s68, 1")
            a("s_lshr_b32 s4, s68, 1")
            a(f"s_mul_i32 s{S_TL}, s{S_PER}, s{S_SUB}")
            a(f"s_add_u32 s{S_TE}, s{S_TL}, s{S_PER}")
            a(f"s_cmp_lt_u32 s{S_SUB}, 2")
            a(f"s_cbranch_scc1 K2_TR{tr[0]}")
            a(f"s_mov_b32 s{S_TL}, s67")
            a(f"s_add_u32 s{S_TE}, s67, s4")
            a(f"s_cmp_eq_u32 s{S_SUB}, 2")
            a(f"s_cbranch_scc1 K2_TR{tr[0]}")
            a(f"s_mov_b32 s{S_TL}, s{S_TE}")
            a(f"s_mov_b32 s{S_TE}, s55")
            a.label(f"K2_TR{tr[0]}")
            tr[0]+=1
        a(f"s_min_u32 s{S_TE}, s{S_TE}, s55")
        a(f"s_min_u32 s{S_TL}, s{S_TL}, s55")
        a(f"s_add_u32 s55, s{S_RB}, {TCAP}")
        a(f"s_cmp_ge_u32 s55, s{S_T}")
        a(f"s_cselect_b32 s{S_PRE}, 1, 0")
        a(f"s_cmp_eq_u64 s[{S_OVM}:{S_OVM+1}], 0")
        a(f"s_cselect_b32 s{S_PRE}, s{S_PRE}, 0")
        a(f"s_lshl_b32 s55, s{S_OCH}, 11")
        a(f"s_cmp_ge_u32 s55, s{S_OCN}")
        a(f"s_cselect_b32 s{S_PRE}, s{S_PRE}, 0")
    def issue_loads(tll):
        a(f"s_lshl_b32 s67, s{tll}, 7")
        a(f"s_add_u32 s68, s67, {L_OFF}")
        a(f"v_lshl_add_u32 v{V_TA}, v{V_HH16}, 2, s68")
        for q in range(4): a(f"ds_read_b128 {vr(G+4*q)}, v{V_TA} offset:{16*q}")
        a(f"s_lshl_b32 s68, s{tll}, 8")
        a(f"v_add_u32 v{V_TB}, s68, v{V_EIA}")
        a(f"ds_read_b64 v[{V_TA}:{V_TB}], v{V_TB}")
    def issue_loads2():
        for q in range(8):
            a(f"v_pk_add_f32 v[{G+2*q}:{G+2*q+1}], v[{G+2*q}:{G+2*q+1}], v[{V_LOFF}:{V_LOFF+1}] op_sel_hi:[1,0]")
        a(f"v_add_u32 v{V_TA}, v{V_TA}, v{V_HH16}")
        a(f"v_mov_b32 v{V_INF}, v{V_TB}")
        if 'noea' not in abl: a(f"buffer_load_dwordx4 {vr(X1)}, v{V_TA}, s[32:35], 0 offen")
        if 'noload' not in abl:
            GF=(' nt' if 'g_nt' in abl else '')+(' sc1' if 'g_sc1' in abl else '')+(' sc0' if 'g_sc0' in abl else '')
            for r in range(16): a(f"buffer_load_dword v{G+r}, v{G+r}, s[36:39], 0 offen"+GF)
    a.label("K2_CLEAN")
    a("s_mov_b32 s67, 0x7ffe00")
    a("s_mov_b32 s68, 0xffff0000")
    a(f"s_lshl_b32 s69, s{S_RB}, 5")
    def write_rec(rec, dl, pos, rel, valid, tag):
        w0,w1_,W2,W3=rec,rec+1,rec+2,rec+3
        Pp,AD,A2,VAL,INF,SL,ONE,DLT=24,25,26,28,29,30,31,32
        a(f"v_subrev_u32 v{Pp}, s69, v{pos}")
        a(f"v_cmp_gt_u32 vcc, {TCAP*32}, v{Pp}")
        a(f"s_and_b64 vcc, vcc, s[{valid}:{valid+1}]")
        a("s_and_saveexec_b64 s[70:71], vcc")
        a(f"s_cbranch_execz K2_WR{tag}")
        a(f"v_lshlrev_b32 v{AD}, 2, v{Pp}")
        a(f"v_and_b32 v{A2}, s67, v{w0}")
        a(f"v_add_u32 v{AD}, {L_OFF}, v{AD}")
        a(f"ds_write_b32 v{AD}, v{A2}")
        a(f"v_lshlrev_b32 v{A2}, 5, v{rel}")
        a(f"v_and_or_b32 v{INF}, v{W3}, s68, v{A2}")
        a(f"v_mov_b32 v{VAL}, v{w1_}")
        a(f"v_lshlrev_b32 v{AD}, 3, v{Pp}")
        a(f"v_add_u32 v{AD}, {L_EI}, v{AD}")
        a(f"ds_write_b64 v{AD}, v[{VAL}:{INF}]")
        a(f"v_lshrrev_b32 v{AD}, 3, v{Pp}")
        a(f"v_lshlrev_b32 v{AD}, 9, v{AD}")
        a(f"v_and_b32 v{A2}, 7, v{Pp}")
        a(f"v_lshl_add_u32 v{AD}, v{A2}, 1, v{AD}")
        a(f"v_and_b32 v{SL}, 7, v{rel}")
        a(f"v_lshl_add_u32 v{AD}, v{SL}, 6, v{AD}")
        a(f"v_lshrrev_b32 v{DLT}, 3, v{dl}")
        a(f"v_lshrrev_b32 v{A2}, 5, v{Pp}")
        a(f"v_sub_u32 v{DLT}, v{DLT}, v{A2}")
        a(f"v_add_u32 v{DLT}, {TCAP-1}, v{DLT}")
        a(f"v_lshlrev_b32 v{DLT}, 11, v{DLT}")
        a(f"v_cmp_lt_u32 vcc, 7, v{rel}")
        a(f"v_cndmask_b32 v{DLT}, 0, v{DLT}, vcc")
        a(f"v_add_u32 v{AD}, v{AD}, v{DLT}")
        a(f"v_mov_b32 v{ONE}, 0x3f80")
        a(f"ds_write_b16 v{AD}, v{ONE} offset:{L_S2}")
        a(f"ds_write_b16 v{AD}, v{W2} offset:{L_S2+16}")
        a(f"ds_write_b16_d16_hi v{AD}, v{W2} offset:{L_S2+32}")
        a(f"ds_write_b16 v{AD}, v{W3} offset:{L_S2+48}")
        a.label(f"K2_WR{tag}")
        a("s_mov_b64 exec, s[70:71]")
    for k,(rec,val) in enumerate(RECS): write_rec(rec,DL(k),RK(k),RL(k),val,"ABCD"[k])
    if 'noearly' not in abl:
        a(f"s_cmp_eq_u32 s{S_FIRST}, 0")
        a("s_cbranch_scc1 K2_WDONE")
        a("s_waitcnt lgkmcnt(0)")
        sb_arrive(3, 36)
        sb_wait(3, 36)
        tile_range()
        a(f"s_cmp_ge_u32 s{S_TL}, s{S_TE}")
        a("s_cbranch_scc1 K2_WDONE")
        a("s_waitcnt vmcnt(0)")
        issue_loads(S_TL)
        a("s_waitcnt lgkmcnt(0)")
        issue_loads2()
        a("s_mov_b32 s14, 1")
        a(f"s_mov_b32 s55, {f2u(-LOG2E)}")
        a(f"v_lshlrev_b32 v36, 16, v{V_WD}")
        a(f"v_and_b32 v37, 0xffff0000, v{V_WD}")
        a("v_mul_f32 v36, s55, v36")
        a("v_mul_f32 v37, s55, v37")
        a(f"v_cvt_pk_bf16_f32 v{V_WD}, v36, v37")
        a("s_branch K2_NOWX")
    a.label("K2_WDONE")
    a(f"s_cmp_eq_u32 s{S_FIRST}, 0")
    a("s_cbranch_scc1 K2_NOWX")
    a("s_waitcnt vmcnt(0)")
    a(f"s_mov_b32 s55, {f2u(-LOG2E)}")
    a(f"v_lshlrev_b32 v36, 16, v{V_WD}")
    a(f"v_and_b32 v37, 0xffff0000, v{V_WD}")
    a("v_mul_f32 v36, s55, v36")
    a("v_mul_f32 v37, s55, v37")
    a(f"v_cvt_pk_bf16_f32 v{V_WD}, v36, v37")
    a.label("K2_NOWX")
    a("s_waitcnt lgkmcnt(0)")
    a("s_barrier")
    stamp(5)
    a(f"s_cmp_eq_u32 s{S_FIRST}, 0")
    a("s_cbranch_scc1 K2_NOW3")
    a(f"s_lshl_b32 s55, s{S_W}, 11")
    a(f"s_add_u32 s55, s55, {L_W3}")
    a(f"v_add_u32 v36, s55, v{V_TMP2}")
    a(f"ds_read_b128 {vr(W3L)}, v36")
    a(f"ds_read_b128 {vr(W3H)}, v36 offset:1024")
    a.label("K2_NOW3")
    tile_range()
    F1=[G,G+4,G+8,G+12,W3L,W3H,ATL,ATH]
    F2=[L+4*i for i in range(8)]
    def load_f(regs, img, l16):
        a(f"s_lshl_b32 s67, s{S_WAVE}, 13")
        a(f"s_add_u32 s67, s67, {img}")
        for ks in range(8):
            if ks==4: a("s_add_u32 s67, s67, 4096")
            if 'nowh' not in abl: a(f"buffer_load_dwordx4 {vr(regs[ks])}, v{l16}, s[40:43], s67 offen offset:{(ks%4)*1024}"+(' nt' if 'w_nt' in abl else ''))
    a(f"s_mov_b32 s{S_CUR}, -1")
    a(f"s_mov_b32 s{S_ATG}, -1")
    a(f"s_mov_b32 s{S_CONT}, -1")
    a(f"s_mov_b32 s15, 0")
    a(f"s_cmp_ge_u32 s{S_TL}, s{S_TE}")
    a("s_cbranch_scc1 K2_LOOPEND")
    a(f"s_mov_b32 s13, s{S_TL}")
    a("s_setprio 3")
    a("s_cmp_eq_u32 s14, 1")
    a("s_cbranch_scc1 K2_HAVE1")
    issue_loads(S_TL)
    a("s_waitcnt lgkmcnt(0)")
    issue_loads2()
    a.label("K2_HAVE1")
    a("s_mov_b32 s14, 0")
    stamp(6)
    a(f"s_add_u32 s55, s{S_TL}, s{S_RB}")
    a("s_lshl_b32 s55, s55, 5")
    a("s_mov_b32 s67, 0")
    a("s_mov_b32 s68, 0")
    for g in range(4):
        a(f"s_cmp_ge_u32 s55, s{S_G1+g}")
        a(f"s_cselect_b32 s68, s{S_G1+g}, s68")
        a(f"s_addc_u32 s67, s67, 0")
    a("s_cmp_lt_u32 s68, s55")
    a(f"s_cselect_b32 s{S_CONT}, s67, -1")
    a(f"s_cmp_eq_u32 s{S_SUB}, 0")
    a(f"s_cselect_b32 s{S_CONT}, -1, s{S_CONT}")
    fl=[0]
    def flush(final=False):
        fl[0]+=1; tg=f"F{fl[0]}"
        a(f"s_lshl_b32 s67, s{S_W}, 7")
        a(f"s_add_u32 s67, s67, {L_WXF}")
        a(f"v_add_u32 v{V_TA}, s67, v{V_HH16}")
        WX=[T,T+4,X2,S2A] if final else [L+8,L+12,H+8,H+12]
        TT=V_TB if final else T
        for i in range(4): a(f"ds_read_b128 {vr(WX[i])}, v{V_TA} offset:{32*i}")
        a(f"s_lshl_b32 s67, s{S_CUR}, 3")
        a(f"s_mov_b32 s68, s{S_CUR}")
        a(f"s_cmp_eq_u32 s{S_CUR}, s{S_CONT}")
        a(f"s_cbranch_scc0 K2_{tg}A")
        a(f"s_cmp_eq_u32 s{S_FIRST}, 0")
        a(f"s_cbranch_scc1 K2_{tg}A")
        a(f"s_lshl_b32 s67, s{S_SUB}, 3")
        a("s_add_u32 s67, s67, 32")
        a(f"s_add_u32 s68, s{S_SUB}, 4")
        a.label(f"K2_{tg}A")
        a(f"s_mul_i32 s67, s67, {MI_STR}")
        a(f"s_lshl_b32 s69, s{S_W}, 7")
        a("s_add_u32 s67, s67, s69")
        a(f"s_add_u32 s67, s67, {L_MI}")
        a(f"v_bfe_u32 v{V_TA}, v{V_LOFF}, 4, 3")
        a(f"v_mul_u32_u24 v{V_TA}, {MI_STR}, v{V_TA}")
        a(f"v_lshrrev_b32 v{TT}, 1, v{V_HH16}")
        a(f"v_add3_u32 v{V_TA}, v{V_TA}, v{TT}, s67")
        for q in range(8): a(f"v_cvt_pk_bf16_f32 v{D2L+q}, v{D2L+2*q}, v{D2L+2*q+1}")
        for q in range(7,-1,-1): a(f"v_cvt_pk_bf16_f32 v{D2H+8+q}, v{D2H+2*q}, v{D2H+2*q+1}")
        D3=D2L+8
        a("s_waitcnt lgkmcnt(0)")
        a(f"v_mfma_f32_32x32x16_bf16 {vr(D3,16)}, {vr(WX[0])}, {vr(D2L)}, 0")
        a(f"v_mfma_f32_32x32x16_bf16 {vr(D3,16)}, {vr(WX[1])}, {vr(D2L+4)}, {vr(D3,16)}")
        a(f"v_mfma_f32_32x32x16_bf16 {vr(D3,16)}, {vr(WX[2])}, {vr(D2H+8)}, {vr(D3,16)}")
        a(f"v_mfma_f32_32x32x16_bf16 {vr(D3,16)}, {vr(WX[3])}, {vr(D2H+12)}, {vr(D3,16)}")
        a("s_mov_b32 exec_lo, 0x11111111")
        a("s_mov_b32 exec_hi, 0x11111111")
        a(f"s_cmp_eq_u32 s{S_FIRST}, 0")
        a(f"s_cbranch_scc1 K2_{tg}B")
        for q in range(0,8,2):
            i=8*((2*q)>>2)
            a(f"ds_write_b64 v{V_TA}, v[{D2L+q}:{D2L+q+1}] offset:{2*i}")
            a(f"ds_write_b64 v{V_TA}, v[{D2H+8+q}:{D2H+8+q+1}] offset:{64+2*i}")
        a(f"s_branch K2_{tg}C")
        a.label(f"K2_{tg}B")
        for q in range(8):
            i=((2*q)&3)+8*((2*q)>>2)
            a(f"ds_pk_add_bf16 v{V_TA}, v{D2L+q} offset:{2*i}")
            a(f"ds_pk_add_bf16 v{V_TA}, v{D2H+8+q} offset:{64+2*i}")
        a.label(f"K2_{tg}C")
        a(f"s_lshl_b32 s67, s68, 7")
        a(f"s_mul_i32 s69, s{S_W}, {1024-128}")
        a("s_add_u32 s67, s67, s69")
        a(f"s_add_u32 s67, s67, {L_POS}")
        a("s_mov_b64 exec, 0xffffffff")
        a(f"v_add_u32 v{TT}, s67, v{V_LOFF}")
        a(f"s_cmp_eq_u32 s{S_FIRST}, 0")
        a(f"s_cbranch_scc1 K2_{tg}D")
        a(f"ds_write_b32 v{TT}, v{D3}")
        a(f"s_branch K2_{tg}E")
        a.label(f"K2_{tg}D")
        a(f"ds_add_f32 v{TT}, v{D3}")
        a.label(f"K2_{tg}E")
        a("s_mov_b64 exec, -1")
    a.label("K2_LOOP")
    if 'noprio' not in abl:
        if 'remprio' in abl:
            a(f"s_sub_u32 s55, s{S_TE}, s{S_TL}")
            if 'pS1' in abl:
                a(f"s_cmp_ge_u32 s{S_WAVE}, 8")
                a("s_cbranch_scc1 K2_P3")
                a("s_cmp_ge_u32 s55, 3")
                a("s_cbranch_scc1 K2_P2")
            elif 'pS2' in abl:
                a(f"s_lshr_b32 s67, s{S_WAVE}, 3")
                a("s_lshl_b32 s67, s67, 1")
                a("s_add_u32 s55, s55, s67")
                a("s_cmp_ge_u32 s55, 5")
                a("s_cbranch_scc1 K2_P3")
                a("s_cmp_ge_u32 s55, 4")
                a("s_cbranch_scc1 K2_P2")
                a("s_add_u32 s55, s55, -1")
            else:
                a("s_cmp_ge_u32 s55, 4")
                a("s_cbranch_scc1 K2_P3")
                a("s_cmp_eq_u32 s55, 3")
                a("s_cbranch_scc1 K2_P2")
            a("s_cmp_eq_u32 s55, 2")
            a("s_cbranch_scc1 K2_P1")
        else:
            a(f"s_sub_u32 s55, s{S_TL}, s13")
            a("s_cmp_eq_u32 s55, 0")
            a("s_cbranch_scc1 K2_P3")
            a("s_cmp_eq_u32 s55, 1")
            a("s_cbranch_scc1 K2_P2")
            a("s_cmp_eq_u32 s55, 2")
            a("s_cbranch_scc1 K2_P1")
        a("s_setprio 0")
        a("s_branch K2_PD")
        a.label("K2_P1")
        a("s_setprio 1")
        a("s_branch K2_PD")
        a.label("K2_P2")
        a("s_setprio 2")
        a("s_branch K2_PD")
        a.label("K2_P3")
        a("s_setprio 3")
        a.label("K2_PD")
    a(f"s_add_u32 s55, s{S_TL}, s{S_RB}")
    a("s_lshl_b32 s55, s55, 5")
    a(f"s_mov_b32 s{S_GB}, 0")
    for g in range(4):
        a(f"s_cmp_ge_u32 s55, s{S_G1+g}")
        a(f"s_addc_u32 s{S_GB}, s{S_GB}, 0")
    a("s_add_u32 s55, s55, 31")
    a(f"s_sub_u32 s67, s{S_N}, 1")
    a("s_min_u32 s55, s55, s67")
    a(f"s_mov_b32 s{S_STR}, 0")
    for g in range(4):
        a(f"s_cmp_ge_u32 s55, s{S_G1+g}")
        a(f"s_addc_u32 s{S_STR}, s{S_STR}, 0")
    a(f"s_sub_u32 s{S_STR}, s{S_STR}, s{S_GB}")
    a("s_movk_i32 s67, 0x1e0")
    a(f"v_and_or_b32 v{V_TA}, v{V_INF}, s67, v{V_HH16}")
    a(f"ds_read_b128 {vr(X2)}, v{V_TA}")
    if 'sel' in abl:
        a(f"s_movk_i32 s67, {L_S2-L_SEL}")
        a(f"v_lshl_add_u32 v{V_TB}, v{V_HH16}, 5, s67")
        a(f"v_sub_u32 v{V_TB}, v{V_S2A}, v{V_TB}")
        for q in range(4): a(f"ds_read_b128 {vr(H+4*q)}, v{V_TB} offset:{q*1024}")
    a(f"s_cmp_eq_u32 s{S_GB}, s{S_ATG}")
    a("s_cbranch_scc1 K2_ATOK")
    a(f"s_lshl_b32 s67, s{S_GB}, 4")
    a(f"s_mul_i32 s68, s{S_W}, 2560")
    a("s_add_u32 s67, s67, s68")
    a(f"s_add_u32 s67, s67, {L_AT}")
    a(f"v_mul_u32_u24 v{V_TA}, 20, v{V_LOFF}")
    a(f"v_add3_u32 v{V_TA}, v{V_TA}, v{V_HH16}, s67")
    a(f"ds_read_b128 {vr(ATL)}, v{V_TA}")
    a(f"ds_read_b128 {vr(ATH)}, v{V_TA} offset:{32*80}")
    a(f"s_mov_b32 s{S_ATG}, s{S_GB}")
    a("s_mov_b32 s67, 0x05040100")
    a("s_mov_b32 s68, 0x07060100")
    a("s_waitcnt lgkmcnt(0)")
    a("s_mov_b32 exec_lo, 0")
    a(f"v_perm_b32 v{ATL+3}, v{V_WD}, v{ATL+3}, s67")
    a(f"v_perm_b32 v{ATH+3}, v{V_WD}, v{ATH+3}, s68")
    a("s_mov_b64 exec, -1")
    a.label("K2_ATOK")
    if 'sel' not in abl:
        a("s_waitcnt vmcnt(0)")
        for r in range(16): a(f"v_lshlrev_b32 v{L+r}, 16, v{G+r}")
        a("s_waitcnt lgkmcnt(0)")
        a("s_mov_b32 s67, 0xffff0000")
        a("s_mov_b32 exec_lo, 0")
        a(f"v_and_or_b32 v{X2+3}, v{V_INF}, s67, v{X2+3}")
        a("s_mov_b64 exec, -1")
        a(f"v_mfma_f32_32x32x16_bf16 {vr(H,16)}, {vr(X1)}, {vr(W3H)}, {vr(G,16)}")
        a(f"v_mfma_f32_32x32x16_bf16 {vr(L,16)}, {vr(X1)}, {vr(W3L)}, {vr(L,16)}")
        a(f"v_mfma_f32_32x32x16_bf16 {vr(H,16)}, {vr(X2)}, {vr(ATH)}, {vr(H,16)}")
        a(f"v_mfma_f32_32x32x16_bf16 {vr(L,16)}, {vr(X2)}, {vr(ATL)}, {vr(L,16)}")
    else:
        a("s_waitcnt lgkmcnt(0)")
        a("s_mov_b32 s67, 0xffff0000")
        a("s_mov_b32 exec_lo, 0")
        a(f"v_and_or_b32 v{X2+3}, v{V_INF}, s67, v{X2+3}")
        a("s_mov_b64 exec, -1")
        a("s_waitcnt vmcnt(0)")
        a(f"v_mfma_f32_32x32x16_bf16 {vr(L,16)}, {vr(H)}, {vr(G)}, 0")
        a(f"v_mfma_f32_32x32x16_bf16 {vr(L,16)}, {vr(H+4)}, {vr(G+4)}, {vr(L,16)}")
        a(f"v_mfma_f32_32x32x16_bf16 {vr(L,16)}, {vr(H+8)}, {vr(G+8)}, {vr(L,16)}")
        a(f"v_mfma_f32_32x32x16_bf16 {vr(L,16)}, {vr(H+12)}, {vr(G+12)}, {vr(L,16)}")
        a(f"v_mfma_f32_32x32x16_bf16 {vr(H,16)}, {vr(X1)}, {vr(W3H)}, {vr(G,16)}")
        a(f"v_mfma_f32_32x32x16_bf16 {vr(H,16)}, {vr(X2)}, {vr(ATH)}, {vr(H,16)}")
        a(f"v_mfma_f32_32x32x16_bf16 {vr(L,16)}, {vr(X1)}, {vr(W3L)}, {vr(L,16)}")
        a(f"v_mfma_f32_32x32x16_bf16 {vr(L,16)}, {vr(X2)}, {vr(ATL)}, {vr(L,16)}")
    a(f"s_add_u32 s{S_NXT}, s{S_TL}, 1")
    a("s_nop 3")
    issue_loads(S_NXT)
    a(f"s_lshl_b32 s67, s{S_TL}, 11")
    a(f"v_add_u32 v{T+7}, s67, v{V_S2A}")
    a(f"ds_read_b128 {vr(S2A)}, v{T+7}")
    a(f"ds_read_b128 {vr(X2)}, v{T+7} offset:512")
    def nextloads():
        a(f"s_cmp_ge_u32 s{S_NXT}, s{S_TE}")
        a("s_cbranch_scc1 K2_NONEXT")
        a("s_waitcnt lgkmcnt(2)")
        issue_loads2()
        a("s_branch K2_NONEXT2")
        a.label("K2_NONEXT")
        a(f"s_cmp_eq_u32 s{S_PRE}, 0")
        a("s_cbranch_scc1 K2_NONEXT2")
        a("s_waitcnt lgkmcnt(2)")
        a(f"v_mbcnt_lo_u32_b32 v{V_TA}, -1, 0")
        a(f"v_mbcnt_hi_u32_b32 v{V_TA}, -1, v{V_TA}")
        a(f"v_lshlrev_b32 v{V_TA}, 4, v{V_TA}")
        load_f(F1, IMG_WH1, V_TA)
        a("s_mov_b32 s15, 1")
        a.label("K2_NONEXT2")
    def silu_blk(base, first):
        for c in range(2):
            y=base+8*c
            if 'notrans' not in abl:
                for j in range(8): a(f"v_exp_f32 v{T+j}, v{y+j}")
            for j in range(4): a(f"v_pk_add_f32 v[{T+2*j}:{T+2*j+1}], v[{T+2*j}:{T+2*j+1}], 1.0")
            if 'notrans' not in abl:
                for j in range(8): a(f"v_rcp_f32 v{T+j}, v{T+j}")
            for j in range(4): a(f"v_pk_mul_f32 v[{T+2*j}:{T+2*j+1}], v[{T+2*j}:{T+2*j+1}], v[{y+2*j}:{y+2*j+1}]")
            for j in range(4): a(f"v_cvt_pk_bf16_f32 v{base+4*c+j}, v{T+2*j}, v{T+2*j+1}")
            if first and c==0: nextloads()
    def silu(base, first):
        if 'blk' in abl: return silu_blk(base, first)
        tp=lambda p: T+(2*p)%8
        for p in range(8+3):
            if p<8:
                a(f"v_exp_f32 v{tp(p)}, v{base+2*p}")
                a(f"v_exp_f32 v{tp(p)+1}, v{base+2*p+1}")
            q=p-1
            if 0<=q<8:
                a(f"v_pk_add_f32 v[{tp(q)}:{tp(q)+1}], v[{tp(q)}:{tp(q)+1}], 1.0")
                a(f"v_rcp_f32 v{tp(q)}, v{tp(q)}")
                a(f"v_rcp_f32 v{tp(q)+1}, v{tp(q)+1}")
            q=p-2
            if 0<=q<8:
                a(f"v_pk_mul_f32 v[{tp(q)}:{tp(q)+1}], v[{tp(q)}:{tp(q)+1}], v[{base+2*q}:{base+2*q+1}]")
            q=p-3
            if 0<=q<8:
                a(f"v_cvt_pk_bf16_f32 v{base+q}, v{tp(q)}, v{tp(q)+1}")
            if first and p==NLP: nextloads()
    NLP = -1 if 'early' in abl else (7 if 'later' in abl else 4)
    if NLP<0 and 'blk' not in abl: nextloads()
    silu(H,True)
    silu(L,False)
    a(f"s_mov_b32 s{S_PG}, s{S_GB}")
    a.label("K2_PASS")
    a(f"s_cmp_eq_u32 s{S_PG}, s{S_CUR}")
    a("s_cbranch_scc1 K2_ACC")
    a(f"s_cmp_lt_i32 s{S_CUR}, 0")
    a("s_cbranch_scc1 K2_NOFL")
    flush()
    a.label("K2_NOFL")
    a(f"s_mov_b32 s{S_CUR}, s{S_PG}")
    a("s_waitcnt lgkmcnt(0)")
    a(f"v_mfma_f32_32x32x16_bf16 {vr(D2L,16)}, {vr(L)}, {vr(S2A)}, 0")
    a(f"v_mfma_f32_32x32x16_bf16 {vr(D2H,16)}, {vr(H)}, {vr(S2A)}, 0")
    a("s_branch K2_ACC2")
    a.label("K2_ACC")
    a("s_waitcnt lgkmcnt(0)")
    a(f"v_mfma_f32_32x32x16_bf16 {vr(D2L,16)}, {vr(L)}, {vr(S2A)}, {vr(D2L,16)}")
    a(f"v_mfma_f32_32x32x16_bf16 {vr(D2H,16)}, {vr(H)}, {vr(S2A)}, {vr(D2H,16)}")
    a.label("K2_ACC2")
    a(f"v_mfma_f32_32x32x16_bf16 {vr(D2L,16)}, {vr(L+4)}, {vr(X2)}, {vr(D2L,16)}")
    a(f"v_mfma_f32_32x32x16_bf16 {vr(D2H,16)}, {vr(H+4)}, {vr(X2)}, {vr(D2H,16)}")
    a(f"s_cmp_eq_u32 s{S_STR}, 0")
    a("s_cbranch_scc1 K2_NEXT")
    a(f"s_mov_b32 s{S_STR}, 0")
    a(f"s_add_u32 s{S_PG}, s{S_GB}, 1")
    a(f"s_add_u32 s67, s{S_GB}, {TCAP}")
    a("s_lshl_b32 s67, s67, 11")
    a(f"v_add_u32 v{T+7}, s67, v{V_S2A}")
    a("s_nop 7")
    a(f"ds_read_b128 {vr(S2A)}, v{T+7}")
    a(f"ds_read_b128 {vr(X2)}, v{T+7} offset:512")
    a("s_branch K2_PASS")
    a.label("K2_NEXT")
    a(f"s_add_u32 s{S_TL}, s{S_TL}, 1")
    a(f"s_cmp_lt_u32 s{S_TL}, s{S_TE}")
    a("s_cbranch_scc1 K2_LOOP")
    a("s_mov_b32 s14, 0")
    a(f"s_cmp_eq_u32 s{S_PRE}, 0")
    a("s_cbranch_scc1 K2_NOF2")
    a("s_nop 7")
    a(f"v_mbcnt_lo_u32_b32 v{V_TA}, -1, 0")
    a(f"v_mbcnt_hi_u32_b32 v{V_TA}, -1, v{V_TA}")
    a(f"v_lshlrev_b32 v{V_TA}, 4, v{V_TA}")
    load_f(F2, IMG_WH2, V_TA)
    a("s_mov_b32 s14, 2")
    a.label("K2_NOF2")
    a("s_nop 3")
    flush(True)
    a.label("K2_LOOPEND")
    a("s_setprio 0")
    stamp(7)
    a(f"s_cmp_eq_u32 s{S_FIRST}, 0")
    a("s_cbranch_scc1 K2_NOSAVE")
    for g in range(4): a(f"s_mov_b32 s{8+g}, s{S_G1+g}")
    a(f"s_mov_b32 s12, s{S_PER}")
    a(f"s_mov_b32 s5, s4")
    a.label("K2_NOSAVE")
    a(f"s_mov_b32 s{S_FIRST}, 0")
    a(f"s_cmp_lg_u32 s{S_PRE}, 0")
    a("s_cbranch_scc1 K2_EPI")
    a("s_waitcnt vmcnt(0) lgkmcnt(0)")
    a(f"s_add_u32 s{S_RB}, s{S_RB}, {TCAP}")
    a(f"s_cmp_lt_u32 s{S_RB}, s{S_T}")
    a("s_cbranch_scc0 K2_OVNEXT")
    a("s_barrier")
    a("s_branch K2_ROUND")
    a.label("K2_OVNEXT")
    a(f"s_lshl_b32 s55, s{S_OCH}, 11")
    a(f"s_cmp_lt_u32 s55, s{S_OCN}")
    a("s_cbranch_scc1 K2_OVGO")
    a(f"s_cmp_eq_u64 s[{S_OVM}:{S_OVM+1}], 0")
    a("s_cbranch_scc1 K2_EPI")
    a(f"s_ff1_i32_b64 s{S_OP}, s[{S_OVM}:{S_OVM+1}]")
    a(f"s_bitset0_b64 s[{S_OVM}:{S_OVM+1}], s{S_OP}")
    a(f"s_lshl_b32 s55, s{S_OP}, 2")
    a(f"s_add_u32 s55, s55, {WS_OVC}")
    a("v_mov_b32 v100, 0")
    a("buffer_load_dword v100, v100, s[40:43], s55 offen")
    a("s_waitcnt vmcnt(0)")
    a(f"v_readfirstlane_b32 s{S_OCN}, v100")
    a(f"s_min_u32 s{S_OCN}, s{S_OCN}, {EPP}")
    a(f"s_mov_b32 s{S_OCH}, 0")
    a("s_branch K2_OVNEXT")
    a.label("K2_OVGO")
    a("s_mov_b32 s69, s55")
    a("s_barrier")
    lane_tid()
    a(f"s_mul_i32 s{S_RB0}, s{S_OP}, 40000")
    a(f"s_add_u32 s{S_RB0}, s{S_RB0}, {WS_OVF}")
    a("s_lshl_b32 s67, s69, 4")
    a(f"s_add_u32 s{S_RB0}, s{S_RB0}, s67")
    a(f"s_add_u32 s{S_RB1}, s{S_RB0}, 16384")
    a(f"s_add_u32 s{S_OCH}, s{S_OCH}, 1")
    a(f"s_cmp_ge_u32 s{S_WAVE}, 8")
    a("s_cbranch_scc1 K2_OVG2")
    load_recs(True)
    a(f"v_lshlrev_b32 v120, 2, v{V_TID}")
    a(f"v_add_u32 v120, {L_CNT}, v120")
    a("v_mov_b32 v121, 0")
    a(f"v_cmp_gt_u32 vcc, 40, v{V_TID}")
    a("s_and_saveexec_b64 s[70:71], vcc")
    a("ds_write_b32 v120, v121")
    a("s_mov_b64 exec, s[70:71]")
    a("s_waitcnt vmcnt(0) lgkmcnt(0)")
    for k,(rec,val) in enumerate(((100,S_V0),(104,S_V1),(108,S_V2),(112,S_V3))):
        a(f"v_add_u32 v120, s69, v{V_TID}")
        if k: a(f"v_add_u32 v120, {512*k}, v120")
        a(f"v_cmp_gt_u32 s[{val}:{val+1}], s{S_OCN}, v120")
        a(f"v_and_b32 v121, 0xff, v{rec}")
        a("v_cmp_eq_u32 vcc, s2, v121")
        a(f"s_and_b64 s[{val}:{val+1}], s[{val}:{val+1}], vcc")
    a.label("K2_OVG2")
    a("s_barrier")
    a("s_branch K2_BATCH")
    a.label("K2_EPI")
    lane_tid()
    a(f"v_lshlrev_b32 v123, 4, v{V_LANE}")
    a("s_cmp_lg_u32 s15, 0")
    a("s_cbranch_scc1 K2_F1OK")
    load_f(F1, IMG_WH1, 123)
    a.label("K2_F1OK")
    a("s_cmp_eq_u32 s14, 2")
    a("s_cbranch_scc1 K2_F2OK")
    load_f(F2, IMG_WH2, 123)
    a.label("K2_F2OK")
    a(f"v_and_b32 v116, 15, v{V_LANE}")
    a(f"v_lshrrev_b32 v117, 4, v{V_LANE}")
    a("v_xor_b32 v118, v116, v117")
    a("v_lshlrev_b32 v118, 4, v118")
    a("v_lshl_add_u32 v118, v116, 9, v118")
    a(f"v_add_u32 v118, {L_HT}, v118")
    a(f"v_mul_u32_u24 v119, {MI_STR}, v116")
    a("v_lshl_add_u32 v119, v117, 4, v119")
    a(f"v_add_u32 v119, {L_MI}, v119")
    UC=104
    XB=[[92,96,100],[24,28,32],[36,40,0]]
    def rdx(step):
        ks=step%8; b=XB[step%3]
        if step<8:
            a(f"v_xor_b32 v120, {ks<<6}, v118")
            for ct in range(3): a(f"ds_read_b128 {vr(b[ct])}, v120 offset:{ct*8192}")
        else:
            for ct in range(3): a(f"ds_read_b128 {vr(b[ct])}, v119 offset:{ct*16*MI_STR+ks*64}")
    def gemm(s0):
        rdx(s0); rdx(s0+1)
        for step in range(s0,s0+8):
            rem=s0+7-step
            if rem>=2:
                rdx(step+2); a("s_waitcnt lgkmcnt(6)")
            elif rem==1: a("s_waitcnt lgkmcnt(3)")
            else: a("s_waitcnt lgkmcnt(0)")
            if step==0: a("s_waitcnt vmcnt(8)")
            if step==8: a("s_waitcnt vmcnt(0)")
            wf=F1[step] if step<8 else F2[step-8]
            b=XB[step%3]
            for ct in range(3):
                c='0' if step==0 else vr(UC+4*ct)
                a(f"v_mfma_f32_16x16x32_bf16 {vr(UC+4*ct)}, {vr(wf)}, {vr(b[ct])}, {c}")
    gemm(0)
    a("s_barrier")
    stamp(8)
    a(f"v_lshrrev_b32 v120, 7, v{V_TID}")
    a(f"v_mul_u32_u24 v120, {MI_STR}, v120")
    a(f"v_and_b32 v121, 127, v{V_TID}")
    a("v_lshl_add_u32 v120, v121, 2, v120")
    a(f"v_add_u32 v120, {L_MI}, v120")
    a("s_mov_b32 s58, 0xffff0000")
    for s in range(1,4):
        if s<3: a(f"s_mul_i32 s55, s12, {32*s}")
        else:
            a("s_lshl_b32 s55, s12, 1")
            a("s_add_u32 s55, s55, s5")
            a("s_lshl_b32 s55, s55, 5")
        a("s_mov_b32 s56, 0")
        for g in range(4):
            a(f"s_cmp_ge_u32 s55, s{8+g}")
            a("s_addc_u32 s56, s56, 0")
        a(f"s_mov_b32 s{59+s}, s56")
        a(f"s_mul_i32 s57, s56, {8*MI_STR}")
        a(f"v_add_u32 v{24+s}, s57, v120")
        a(f"ds_read_b32 v{28+s}, v{24+s}")
        a(f"ds_read_b32 v{32+s}, v120 offset:{(32+8*s)*MI_STR}")
    a("s_waitcnt lgkmcnt(0)")
    for s in range(1,4):
        if s==1:
            a(f"v_lshlrev_b32 v36, 16, v{28+s}")
            a(f"v_and_b32 v37, s58, v{28+s}")
        else:
            a(f"s_cmp_eq_u32 s{59+s}, s{58+s}")
            a(f"s_cbranch_scc1 K2_FX{s}")
            a(f"v_lshlrev_b32 v36, 16, v{28+s}")
            a(f"v_and_b32 v37, s58, v{28+s}")
            a.label(f"K2_FX{s}")
        a(f"v_lshlrev_b32 v38, 16, v{32+s}")
        a(f"v_and_b32 v39, s58, v{32+s}")
        a("v_add_f32 v36, v36, v38")
        a("v_add_f32 v37, v37, v39")
        a(f"v_cvt_pk_bf16_f32 v40, v36, v37")
        a(f"ds_write_b32 v{24+s}, v40")
    a("s_waitcnt lgkmcnt(0)")
    a("s_barrier")
    stamp(12)
    gemm(8)
    stamp(13)
    a(f"s_lshl_b32 s55, s{S_WAVE}, 1")
    a("v_lshrrev_b32 v120, 1, v117")
    a("v_add_u32 v120, s55, v120")
    a("v_xor_b32 v120, v120, v116")
    a("v_lshlrev_b32 v120, 4, v120")
    a("v_lshl_add_u32 v120, v116, 9, v120")
    a("v_and_b32 v121, 1, v117")
    a("v_lshl_add_u32 v120, v121, 3, v120")
    a(f"v_add_u32 v120, {L_HT}, v120")
    for ct in range(3): a(f"ds_read_b64 v[{36+2*ct}:{37+2*ct}], v120 offset:{ct*8192}")
    a("s_mul_i32 s55, s2, 40")
    a("s_lshl_b32 s55, s55, 9")
    a(f"s_lshl_b32 s56, s{S_WAVE}, 5")
    a("s_add_u32 s55, s55, s56")
    a("v_lshlrev_b32 v121, 9, v116")
    a("v_lshl_add_u32 v121, v117, 3, v121")
    a(f"s_mov_b32 s56, {f2u(-LOG2E)}")
    a("s_mov_b32 s57, 0xffff0000")
    a("s_waitcnt lgkmcnt(0)")
    a("s_mov_b32 s58, s56") if False else None
    a(f"s_mov_b32 s66, {f2u(-LOG2E)}")
    a(f"s_mov_b32 s67, {f2u(-LOG2E)}")
    for ct in range(3):
        u=UC+4*ct
        for r in (0,2): a(f"v_pk_mul_f32 v[{8+r}:{9+r}], v[{u+r}:{u+r+1}], s[66:67]")
        for r in range(4): a(f"v_exp_f32 v{8+r}, v{8+r}")
        h0,h1=36+2*ct,37+2*ct
        a(f"v_lshlrev_b32 v12, 16, v{h0}")
        a(f"v_and_b32 v13, s57, v{h0}")
        for r in (0,2): a(f"v_pk_add_f32 v[{8+r}:{9+r}], v[{8+r}:{9+r}], 1.0")
        for r in range(4): a(f"v_rcp_f32 v{8+r}, v{8+r}")
        a(f"v_lshlrev_b32 v14, 16, v{h1}")
        a(f"v_and_b32 v15, s57, v{h1}")
        for r in (0,2): a(f"v_pk_fma_f32 v[{8+r}:{9+r}], v[{8+r}:{9+r}], v[{u+r}:{u+r+1}], v[{12+r}:{13+r}]")
        a(f"v_cvt_pk_bf16_f32 v{16+2*ct}, v8, v9")
        a(f"v_cvt_pk_bf16_f32 v{17+2*ct}, v10, v11")
        if ct==2:
            a("v_cmp_gt_u32 vcc, 8, v116")
            a("s_and_saveexec_b64 s[70:71], vcc")
        a(f"s_add_u32 s58, s55, {ct*8192}")
        a(f"buffer_store_dwordx2 v[{16+2*ct}:{17+2*ct}], v121, s[44:47], s58 offen"+(' nt' if 'o_nt' in abl else '')+(' sc1' if 'o_sc1' in abl else ''))
        if ct==2: a("s_mov_b64 exec, s[70:71]")
    stamp(9)
    rstamp(15)
    stamp_out()
    a(f"s_cmp_ge_u32 s{S_WAVE}, 2")
    a("s_cbranch_scc1 K2_END")
    a(f"v_mbcnt_lo_u32_b32 v{V_LANE}, -1, 0")
    a(f"v_mbcnt_hi_u32_b32 v{V_LANE}, -1, v{V_LANE}")
    a(f"s_lshl_b32 s55, s{S_WAVE}, 6")
    a(f"v_add_u32 v8, s55, v{V_LANE}")
    a("v_mul_u32_u24 v9, 0x5556, v8")
    a("v_lshrrev_b32 v9, 16, v9")
    a("v_mul_u32_u24 v10, 3, v9")
    a("v_sub_u32 v10, v8, v10")
    a("v_lshrrev_b32 v15, 3, v9")
    a("v_and_b32 v16, 7, v9")
    a("v_lshl_add_u32 v16, v16, 2, v10")
    a("v_lshlrev_b32 v16, 2, v16")
    a(f"v_add_u32 v16, {L_POS+4}, v16")
    a("v_lshl_add_u32 v11, v15, 7, v16")
    for w in range(4): a(f"ds_read_b32 v{20+w}, v11 offset:{w*1024}")
    for s in range(1,4):
        for w in range(4): a(f"ds_read_b32 v{20+4*s+w}, v16 offset:{w*1024+(4+s)*128}")
    srd(a,72,6,N*6)
    a("s_mul_i32 s55, s2, 240")
    a("v_lshlrev_b32 v13, 1, v8")
    a("v_cmp_gt_u32 vcc, 120, v8")
    a("s_and_saveexec_b64 s[70:71], vcc")
    a("s_cbranch_execz K2_END")
    a("buffer_load_ushort v14, v13, s[72:75], s55 offen")
    a("s_waitcnt lgkmcnt(0)")
    a("v_add_f32 v20, v20, v21")
    a("v_add_f32 v22, v22, v23")
    a("v_add_f32 v12, v20, v22")
    for s in range(1,4):
        b=20+4*s
        a(f"v_add_f32 v{b}, v{b}, v{b+1}")
        a(f"v_add_f32 v{b+2}, v{b+2}, v{b+3}")
        a(f"v_add_f32 v{b}, v{b}, v{b+2}")
        a(f"v_cmp_eq_u32 vcc, s{59+s}, v15")
        a(f"v_cndmask_b32 v{b}, 0, v{b}, vcc")
        a(f"v_add_f32 v12, v12, v{b}")
    a(f"s_mov_b32 s56, {f2u(-LN2)}")
    a("s_waitcnt vmcnt(0)")
    a("v_lshlrev_b32 v14, 16, v14")
    a("v_fma_f32 v14, v12, s56, v14")
    a("v_cvt_pk_bf16_f32 v14, v14, v14")
    a(f"s_add_u32 s55, s55, {N*512}")
    a("buffer_store_short v14, v13, s[44:47], s55 offen")
    a.label("K2_END")
    a("s_endpgm")
    return a
```
